```python
import torch

def _softmax(x, axis=-1):
    return torch.softmax(x, dim=axis)
def _gelu(x):
    return torch.nn.functional.gelu(x, approximate="tanh")
def _silu(x):
    return torch.nn.functional.silu(x)
def _sigmoid(x):
    return torch.sigmoid(x)
def _layernorm(x, axis=-1, eps=1e-5):
    m = x.mean(dim=axis, keepdim=True)
    v = x.var(dim=axis, keepdim=True, unbiased=False)
    return (x - m) / torch.sqrt(v + eps)
def _scatter_add(tgt, idx, src, axis=0):
    return tgt.clone().index_add_(axis, idx, src)
def _segment_sum(src, seg, n):
    out = torch.zeros((n,) + src.shape[1:], dtype=src.dtype)
    return out.index_add_(0, seg, src)
def _pad(x, pw):
    flat = tuple(v for pair in reversed(pw) for v in pair)
    return torch.nn.functional.pad(x, flat)

kernel_name = 'parallel_sum__linear_kernel_hedgehog__glu_gated_reglu__prompt'

def setup_inputs():

    _w = (lambda a: (lambda t: t.to(torch.bfloat16) if t.is_floating_point() else t)(torch.as_tensor(a)))
    def _A_setup():
        B, S, D, H = 1, 2048, 640, 32
        Dh = D // H
        return {
            "x": _w((lambda *s: torch.randn(*s, dtype=torch.bfloat16) * 0.05)(B, S, D)),
            "wqkv": _w((lambda *s: torch.randn(*s, dtype=torch.bfloat16) * 0.2)(D, 3 * D)),
            "w_phi": _w((lambda *s: torch.randn(*s, dtype=torch.bfloat16) * 0.2)(H, Dh, Dh) * (Dh ** -0.5)),
            "wo": _w((lambda *s: torch.randn(*s, dtype=torch.bfloat16) * 0.05)(D, D)),
        }
    _A_in = _A_setup()

    def _B_setup():
        B, S, D, F = 1, 2048, 640, 1728
        return {
            "x": _w((lambda *s: torch.randn(*s, dtype=torch.bfloat16) * 0.05)(B, S, D)),
            "W_gate": _w((lambda *s: torch.randn(*s, dtype=torch.bfloat16) * 0.4)(D, F) * (2.0 / D) ** 0.5),
            "W_up": _w((lambda *s: torch.randn(*s, dtype=torch.bfloat16) * 0.4)(D, F) * (2.0 / D) ** 0.5),
            "W_down": _w((lambda *s: torch.randn(*s, dtype=torch.bfloat16) * 0.4)(F, D) * (1.0 / F) ** 0.5),
        }
    _B_in = _B_setup()

    return {
        "A_x": _A_in["x"],
        "A_wqkv": _A_in["wqkv"],
        "A_w_phi": _A_in["w_phi"],
        "A_wo": _A_in["wo"],
        "B_x": _B_in["x"],
        "B_W_gate": _B_in["W_gate"],
        "B_W_up": _B_in["W_up"],
        "B_W_down": _B_in["W_down"],
    }

def reference(A_x, A_wqkv, A_w_phi, A_wo, B_x, B_W_gate, B_W_up, B_W_down):
    def _A_ref(x, wqkv, w_phi, wo):
        B, S, D = x.shape
        H = 32; Dh = D // H
        qkv = (lambda x, *d: x.permute(*d))((x @ wqkv).reshape(B, S, 3, H, Dh), 2, 0, 3, 1, 4)
        q, k, v = qkv[0], qkv[1], qkv[2]
        pq = torch.einsum("bhsd,hdf->bhsf", q, w_phi)
        pk = torch.einsum("bhsd,hdf->bhsf", k, w_phi)
        phi_q = torch.concatenate([_softmax(pq, axis=-1), _softmax(-pq, axis=-1)], axis=-1)
        phi_k = torch.concatenate([_softmax(pk, axis=-1), _softmax(-pk, axis=-1)], axis=-1)
        kv = torch.einsum("bhsf,bhsd->bhfd", phi_k, v)
        z  = torch.einsum("bhsf->bhf", phi_k)
        num = torch.einsum("bhqf,bhfd->bhqd", phi_q, kv)
        den = torch.einsum("bhqf,bhf->bhq", phi_q, z)[..., None] + 1e-6
        o = num / den
        return (lambda x, *d: x.permute(*d))(o, 0, 2, 1, 3).reshape(B, S, D) @ wo

    def _B_ref(x, W_gate, W_up, W_down):
        gate = torch.einsum("bsd,df->bsf", x, W_gate)
        up = torch.einsum("bsd,df->bsf", x, W_up)
        gate = gate * (lambda x, dt: x.to(dt))(gate > 0, gate.dtype)
        h = gate * up
        return torch.einsum("bsf,fd->bsd", h, W_down)

    x = A_x
    xn = _layernorm(x, axis=-1)
    return x + _A_ref(xn, A_wqkv, A_w_phi, A_wo) + _B_ref(xn, B_W_gate, B_W_up, B_W_down)
```

```python
import re

_REG1 = re.compile(r"^-?\|?(v|a|s)(\d+)\|?$")
_REGN = re.compile(r"^-?\|?(v|a|s)\[(\d+):(\d+)\]\|?$")
_ABS = re.compile(r"^-?abs\((.*)\)$")


def regs_of(tok):
    tok = tok.strip()
    m = _ABS.match(tok)
    if m:
        tok = m.group(1)
    m = _REG1.match(tok)
    if m:
        return [m.group(1) + m.group(2)]
    m = _REGN.match(tok)
    if m:
        return [m.group(1) + str(i) for i in range(int(m.group(2)), int(m.group(3)) + 1)]
    if tok == "vcc":
        return ["vcc"]
    if tok == "exec":
        return ["exec"]
    if tok == "m0":
        return ["m0"]
    return []


def split_ops(s):
    out, depth, cur = [], 0, ""
    for ch in s:
        if ch in "[(":
            depth += 1
        if ch in "])":
            depth -= 1
        if ch == "," and depth == 0:
            out.append(cur.strip())
            cur = ""
        else:
            cur += ch
    if cur.strip():
        out.append(cur.strip())
    return out


TRANS = ("v_exp_f32", "v_log_f32", "v_rcp_f32", "v_rsq_f32", "v_sqrt_f32", "v_sin_f32", "v_cos_f32")
SALU_NODST = ("s_cmp_", "s_waitcnt", "s_barrier", "s_nop", "s_branch", "s_cbranch", "s_setprio", "s_sleep",
              "s_endpgm", "s_bitcmp")
SALU_SCC_W = ("s_add_", "s_sub_", "s_addc_", "s_subb_", "s_and_", "s_or_", "s_xor_", "s_lshl_", "s_lshr_",
              "s_ashr_", "s_cmp_", "s_min_", "s_max_", "s_andn2", "s_bitcmp", "s_not_", "s_addk", "s_bfe_",
              "s_orn2")
SALU_SCC_R = ("s_cselect", "s_addc_", "s_subb_", "s_cbranch_scc")


class Ins:
    __slots__ = ("text", "mn", "kind", "wr", "rd", "passes", "tok", "srcC", "accrw", "cost", "wide", "mods", "note")

    def __init__(self, text, tok=None, cost=None):
        self.text = text.strip()
        self.tok = tok
        self.passes = 0
        self.srcC = []
        self.wide = False
        self.note = None
        t = self.text
        if t.endswith(":"):
            self.mn, self.kind, self.wr, self.rd, self.cost, self.mods = t, "label", [], [], 0, ""
            return
        parts = t.split(None, 1)
        mn = parts[0]
        self.mn = mn
        rest = parts[1] if len(parts) > 1 else ""
        ops = split_ops(rest)
        mods = ""
        if ops:
            last = ops[-1].split(None, 1)
            if len(last) > 1:
                ops[-1] = last[0]
                mods = last[1]
        self.mods = mods
        R = [regs_of(o) for o in ops]
        wr, rd = [], []
        if mn.startswith("v_mfma"):
            self.kind = "mfma"
            wr = R[0]
            rd = R[1] + R[2] + R[3]
            self.srcC = R[3]
            self.passes = 8 if "32x32x16" in mn else (4 if "16x16x32" in mn else (2 if "4x4x4" in mn else 8))
            c = 8
        elif mn.startswith("v_"):
            self.kind = "trans" if mn.startswith(TRANS) else "valu"
            c = 8 if self.kind == "trans" else 4
            if mn.startswith("v_cmp"):
                wr = R[0]
                rd = sum(R[1:], [])
            elif mn.startswith("v_permlane") and "swap" in mn:
                wr = R[0] + R[1]
                rd = R[0] + R[1]
            elif mn.startswith(("v_add_co", "v_sub_co", "v_addc_co", "v_subb_co")):
                wr = R[0] + R[1]
                rd = sum(R[2:], [])
            else:
                wr = R[0]
                rd = sum(R[1:], [])
                if mn.startswith(("v_fmac", "v_dot2c", "v_mac", "v_writelane")) or "_dpp" in mn or "d16" in mn:
                    rd = rd + R[0]
                if mn.startswith("v_cndmask") and len(ops) == 3:
                    rd = rd + ["vcc"]
            if not mn.startswith(("v_readlane", "v_readfirstlane", "v_writelane")):
                rd = rd + ["exec"]
        elif mn.startswith("ds_"):
            self.kind = "ds"
            if mn.startswith("ds_read") or mn.startswith(("ds_bpermute", "ds_swizzle")):
                wr = R[0]
                rd = sum(R[1:], [])
                if "d16" in mn:
                    rd = rd + R[0]
                c = 12 if "b128" in mn else 8
            else:
                rd = sum(R, [])
                c = 22 if "b128" in mn else (12 if "b64" in mn else 8)
        elif mn.startswith(("buffer_", "global_")):
            self.kind = "vmem"
            c = 8
            is_lds = re.search(r"\blds\b", mods) is not None
            if "load" in mn and not is_lds:
                wr = R[0]
                rd = sum(R[1:], [])
                if "d16" in mn:
                    rd = rd + R[0]
            elif "atomic" in mn and "sc0" in mods:
                wr = R[0]
                rd = sum(R, [])
            else:
                rd = sum(R, [])
                if is_lds:
                    rd = rd + ["m0"]
                if "store" in mn and ("x4" in mn or "x3" in mn):
                    self.wide = True
        elif mn.startswith("s_load") or mn.startswith(("s_memtime", "s_memrealtime")):
            self.kind = "smem"
            wr = R[0]
            rd = sum(R[1:], [])
            c = 4
        elif mn.startswith("s_"):
            c = 4
            if mn == "s_waitcnt":
                self.kind = "wait"
            elif mn == "s_barrier":
                self.kind = "barrier"
            elif mn == "s_nop":
                self.kind = "nop"
            elif mn.startswith(("s_branch", "s_cbranch", "s_endpgm")):
                self.kind = "branch"
            else:
                self.kind = "salu"
            if mn.startswith(SALU_NODST):
                rd = sum(R, [])
            else:
                wr = R[0]
                rd = sum(R[1:], [])
                if mn.startswith(("s_addk", "s_mulk")):
                    rd = rd + R[0]
            if "saveexec" in mn:
                wr = wr + ["exec", "scc"]
                rd = rd + ["exec"]
            if mn.startswith(SALU_SCC_W):
                wr = wr + ["scc"]
            if mn.startswith(SALU_SCC_R):
                rd = rd + ["scc"]
            if mn.startswith("s_cbranch_vcc"):
                rd = rd + ["vcc"]
            if mn.startswith("s_cbranch_exec"):
                rd = rd + ["exec"]
        else:
            raise ValueError("unknown instruction: " + t)
        self.wr, self.rd = wr, rd
        self.cost = c if cost is None else cost


class Need:
    def __init__(self, tok):
        self.tok = tok
        self.kind = "need"
        self.cost = 0


class Raw:
    def __init__(self, what):
        self.what = what
        self.kind = "raw"
        self.cost = 0


def is_v(r):
    return r[0] in "va" and r[1:].isdigit()


def is_s(r):
    return (r[0] == "s" and r[1:].isdigit()) or r == "vcc"


class Prog:
    def __init__(self):
        self.items = []
        self.nops_added = 0
        self.waits_added = 0

    def __call__(self, text, tok=None, cost=None):
        for line in text.split("\n"):
            line = line.strip()
            if line:
                self.items.append(Ins(line, tok=tok, cost=cost))
        return self

    def add(self, it):
        self.items.append(it)

    def extend(self, its):
        self.items.extend(its)

    def need(self, tok):
        self.items.append(Need(tok))

    def drain(self):
        self.items.append(Ins("s_waitcnt vmcnt(0) lgkmcnt(0)"))

    def settle(self):
        self.items.append(Raw("settle"))

    def resolve_waits(self):
        out = []
        vm_age, lg_age = {}, {}
        smem_pending = set()

        def bump(d):
            for k in d:
                d[k] += 1

        def apply_wait(vm, lg):
            if vm is not None:
                for k in [k for k, a in vm_age.items() if a >= vm]:
                    del vm_age[k]
            if lg is not None:
                for k in [k for k, a in lg_age.items() if a >= lg]:
                    del lg_age[k]
                if lg == 0:
                    smem_pending.clear()

        def emit_wait(vm, lg):
            parts = []
            if vm is not None:
                vm = min(vm, 63)
                parts.append("vmcnt(%d)" % vm)
            if lg is not None:
                lg = min(lg, 15)
                parts.append("lgkmcnt(%d)" % lg)
            if out and isinstance(out[-1], Ins) and out[-1].kind == "wait" and out[-1].note == "auto":
                pv = re.search(r"vmcnt\((\d+)\)", out[-1].text)
                pl = re.search(r"lgkmcnt\((\d+)\)", out[-1].text)
                if vm is None and pv:
                    vm = int(pv.group(1))
                elif vm is not None and pv:
                    vm = min(vm, int(pv.group(1)))
                if lg is None and pl:
                    lg = int(pl.group(1))
                elif lg is not None and pl:
                    lg = min(lg, int(pl.group(1)))
                out.pop()
                self.waits_added -= 1
                parts = []
                if vm is not None:
                    parts.append("vmcnt(%d)" % vm)
                if lg is not None:
                    parts.append("lgkmcnt(%d)" % lg)
            w = Ins("s_waitcnt " + " ".join(parts))
            w.note = "auto"
            out.append(w)
            self.waits_added += 1
            apply_wait(vm, lg)

        for it in self.items:
            if it.kind == "need":
                k = "tok:" + it.tok
                vm, lg = vm_age.get(k), lg_age.get(k)
                if vm is not None or lg is not None:
                    emit_wait(vm, lg)
                continue
            if it.kind in ("raw", "label"):
                out.append(it)
                continue
            if it.kind == "wait":
                mv = re.search(r"vmcnt\((\d+)\)", it.text)
                ml = re.search(r"lgkmcnt\((\d+)\)", it.text)
                apply_wait(int(mv.group(1)) if mv else None, int(ml.group(1)) if ml else None)
                out.append(it)
                continue
            touched = set(it.rd) | set(it.wr)
            vm = [vm_age[r] for r in touched if r in vm_age]
            lg = [lg_age[r] for r in touched if r in lg_age]
            sm = any(r in smem_pending for r in touched)
            if vm or lg or sm:
                emit_wait(min(vm) if vm else None, 0 if sm else (min(lg) if lg else None))
            out.append(it)
            if it.kind == "vmem":
                bump(vm_age)
                for r in it.wr:
                    vm_age[r] = 0
                if it.tok:
                    vm_age["tok:" + it.tok] = 0
            elif it.kind == "ds":
                bump(lg_age)
                for r in it.wr:
                    lg_age[r] = 0
                if it.tok:
                    lg_age["tok:" + it.tok] = 0
            elif it.kind == "smem":
                for r in it.wr:
                    smem_pending.add(r)
                for k in lg_age:
                    lg_age[k] = 0 if False else lg_age[k]
                if lg_age:
                    raise ValueError("scalar load while LDS ops are outstanding: " + it.text)
        self.items = out

    @staticmethod
    def _need_states(p, c):
        n = 0
        pw, cr, cw = set(p.wr), set(c.rd), set(c.wr)
        vw = {r for r in pw if is_v(r)}
        if p.kind in ("valu", "trans"):
            if c.kind == "mfma" and vw & cr:
                n = max(n, 2)
            if c.kind == "mfma" and "exec" in pw:
                n = max(n, 4)
            if c.mn.startswith("v_permlane") and vw & cr:
                n = max(n, 2)
            if c.mn.startswith(("v_readlane", "v_readfirstlane")) and vw & cr:
                n = max(n, 1)
            if ("_dpp" in c.mn or "row_" in c.mods or "quad_perm" in c.mods) and vw & cr:
                n = max(n, 2)
            sw = {r for r in pw if is_s(r)}
            if sw:
                if c.kind == "vmem" and sw & cr:
                    n = max(n, 5)
                if c.kind in ("valu", "trans") and sw & cr:
                    n = max(n, 4 if c.mn.startswith(("v_readlane", "v_writelane")) else 2)
                if c.kind in ("salu", "branch") and sw & cr:
                    n = max(n, 4)
            if p.kind == "trans" and c.kind in ("valu", "mfma", "vmem", "ds") and vw & cr:
                n = max(n, 1)
        if p.kind == "mfma":
            P = p.passes
            d = set(p.wr)
            if c.kind == "mfma":
                cC = set(c.srcC)
                ab = set(c.rd) - cC
                if d & ab:
                    n = max(n, {2: 5, 4: 8, 8: 12}[P])
                if d & cC:
                    if cC == d and c.passes == P:
                        n = max(n, 2 if P == 2 else 0)
                    else:
                        n = max(n, {2: 4, 4: 6, 8: 10}[P])
                if d & cw and not (cC == d):
                    n = max(n, {2: 5, 4: 8, 8: 12}[P])
            elif c.kind in ("valu", "trans", "vmem", "ds"):
                if d & (cr | cw):
                    n = max(n, {2: 5, 4: 8, 8: 12}[P])
                if c.kind in ("valu", "trans") and set(p.srcC) & cw:
                    n = max(n, {2: 1, 4: 3, 8: 7}[P])
        if p.kind == "salu" and "m0" in pw and c.kind == "vmem" and "m0" in cr:
            n = max(n, 1)
        if p.kind == "salu" and "exec" in pw and c.kind == "mfma":
            n = max(n, 1)
        if p.kind == "vmem" and p.wide:
            data = set(p.rd)
            if c.kind in ("valu", "trans") and {r for r in cw if is_v(r)} & data:
                n = max(n, 2)
            elif c.kind in ("ds", "vmem", "mfma") and {r for r in cw if is_v(r)} & data:
                n = max(n, 1)
        return n

    def resolve_hazards(self):
        out = []
        hist = []

        def advance(k):
            for h in hist:
                h[1] += k
            while hist and hist[0][1] > 24:
                hist.pop(0)

        for it in self.items:
            if it.kind == "raw":
                if it.what == "settle":
                    worst = 0
                    for p, el in hist:
                        need = 0
                        if p.kind == "mfma":
                            need = {2: 5, 4: 8, 8: 12}[p.passes]
                        elif p.kind in ("valu", "trans"):
                            need = 5 if any(is_s(r) for r in p.wr) else 2
                        elif p.kind in ("salu", "vmem"):
                            need = 2
                        worst = max(worst, need - el)
                    while worst > 0:
                        k = min(worst, 16)
                        out.append(Ins("s_nop %d" % (k - 1)))
                        self.nops_added += 1
                        advance(k)
                        worst -= k
                continue
            if it.kind == "label":
                out.append(it)
                continue
            short = 0
            for p, el in hist:
                need = self._need_states(p, it)
                short = max(short, need - el)
            while short > 0:
                k = min(short, 16)
                out.append(Ins("s_nop %d" % (k - 1)))
                self.nops_added += 1
                advance(k)
                short -= k
            out.append(it)
            if it.kind == "nop":
                advance(int(it.text.split()[1]) + 1)
            else:
                advance(1)
            hist.append([it, 0])
        self.items = out

    def finish(self):
        self.resolve_waits()
        self.resolve_hazards()
        return "\n".join(("" if i.kind == "label" else "  ") + i.text for i in self.items)


def interleave(backbone, fillers, gap=32, slack=0):
    out = []
    credit = slack
    fi = 0
    for grp in backbone:
        fixed = 0
        g = gap
        for it in grp:
            out.append(it)
            fixed += it.cost
            if it.kind == "mfma":
                g = it.passes * 4
        credit += g - fixed
        while fi < len(fillers):
            c = fillers[fi].cost
            if c > credit + 2:
                break
            f = fillers[fi]
            out.append(f)
            credit -= c
            fi += 1
        credit = min(credit, 24)
    return out, fillers[fi:]


def L(text, tok=None, cost=None):
    return [Ins(l, tok=tok, cost=cost) for l in text.split("\n") if l.strip()]


class Gap:
    def __init__(self, n):
        self.n = n
        self.kind = "gap"
        self.cost = 0


class Mark:
    def __init__(self, name):
        self.name = name
        self.kind = "mark"
        self.cost = 0


class Sched:
    def __init__(self, prog):
        self.p = prog
        self.q = []
        self.credit = 0
        self.window = []
        self.hold = 0

    def push(self, items):
        self.q.extend(items)

    def _emit(self, it):
        self.p.add(it)
        if isinstance(it, Ins):
            self.window.append(it)
            if len(self.window) > 16:
                self.window.pop(0)

    def _clear(self, it):
        if not isinstance(it, Ins):
            return True
        n = len(self.window)
        for i, prev in enumerate(self.window):
            if Prog._need_states(prev, it) > n - 1 - i:
                return False
        return True

    def group(self, grp, fill=True):
        fixed, span = 0, 0
        for it in grp:
            self._emit(it)
            fixed += it.cost
            if it.kind == "mfma":
                span += it.passes * 4
        self.credit += max(span, fixed) - fixed
        if self.hold > 0:
            self.hold -= 1
        while fill and self.q and self.hold == 0:
            f = self.q[0]
            if f.kind == "gap":
                self.q.pop(0)
                self.hold = f.n
                continue
            if f.kind == "mark":
                self.q.pop(0)
                continue
            if f.cost > self.credit + 2 or not self._clear(f):
                break
            self.q.pop(0)
            self._emit(f)
            self.credit -= f.cost
            if f.kind == "mfma":
                self.credit += f.passes * 4
        self.credit = min(self.credit, 28)

    def flush(self, upto=None):
        if upto is not None and not any(f.kind == "mark" and f.name == upto for f in self.q):
            return
        while self.q:
            f = self.q.pop(0)
            if f.kind == "mark":
                if f.name == upto:
                    break
                continue
            if f.kind == "gap":
                continue
            self._emit(f)
        self.credit = 0
        self.hold = 0
```

```python
from asmb import Prog, L
from layout import *
from k2gen import srd, OOB, Stamps

def allreduce16(p, v):
    for sh in (8, 4, 2, 1):
        p(f"v_add_f32_dpp v{v}, v{v}, v{v} row_ror:{sh} row_mask:0xf bank_mask:0xf")

def swap_add(p, v, t, kind):
    p(f"v_mov_b32 v{t}, v{v}\nv_permlane{kind}_swap_b32 v{v}, v{t}\nv_add_f32 v{v}, v{v}, v{t}")

def job_stats(p, sX, sST, s_id, s_w):
    p(f"s_lshl_b32 s60, s{s_id}, 3\ns_lshl_b32 s61, s{s_w}, 1\ns_add_u32 s60, s60, s61")
    p("v_lshrrev_b32 v2, 5, v1\nv_add_u32 v2, s60, v2\nv_and_b32 v3, 31, v1")
    p("v_mul_u32_u24 v4, 1280, v2\nv_lshlrev_b32 v5, 4, v3\nv_add_u32 v4, v4, v5")
    p(f"v_add_u32 v5, 1024, v4\nv_cmp_gt_u32 vcc, 16, v3\nv_mov_b32 v6, {OOB}\nv_cndmask_b32 v5, v6, v5, vcc\nv_cndmask_b32 v7, 0, 1.0, vcc")
    p(f"buffer_load_dwordx4 v[8:11], v4, s[{sX}:{sX+3}], 0 offen")
    p(f"buffer_load_dwordx4 v[12:15], v4, s[{sX}:{sX+3}], 0 offen offset:512")
    p(f"buffer_load_dwordx4 v[16:19], v5, s[{sX}:{sX+3}], 0 offen")

def job_stats_finish(p, sST):
    E = 24
    for d in range(12):
        p(f"v_lshlrev_b32 v{E+2*d}, 16, v{8+d}\nv_and_b32 v{E+2*d+1}, 0xffff0000, v{8+d}")
    p(f"v_add_f32 v20, v{E}, v{E+1}")
    for i in range(2, 24):
        p(f"v_add_f32 v20, v20, v{E+i}")
    allreduce16(p, 20); swap_add(p, 20, 21, 16)
    p("v_mul_f32 v20, 0x3acccccd, v20")
    for i in range(24):
        p(f"v_sub_f32 v{E+i}, v{E+i}, v20")
    p(f"v_mul_f32 v21, v{E}, v{E}")
    for i in range(1, 16):
        p(f"v_fmac_f32 v21, v{E+i}, v{E+i}")
    p(f"v_mul_f32 v22, v{E+16}, v{E+16}")
    for i in range(17, 24):
        p(f"v_fmac_f32 v22, v{E+i}, v{E+i}")
    p("v_fmac_f32 v21, v22, v7")
    allreduce16(p, 21); swap_add(p, 21, 22, 16)
    p("s_mov_b32 s61, 0x3727c5ac")
    p("v_mov_b32 v22, s61\nv_fmac_f32 v22, 0x3acccccd, v21\nv_rsq_f32 v21, v22")
    p(f"v_lshlrev_b32 v4, 3, v2\nv_cmp_eq_u32 vcc, 0, v3\nv_mov_b32 v6, {OOB}\nv_cndmask_b32 v4, v6, v4, vcc")
    p(f"buffer_store_dwordx2 v[20:21], v4, s[{sST}:{sST+3}], 0 offen")

def gen_k0(name="k0_kernel", prof=False):
    p = Prog()
    st_ = Stamps(p, prof)
    sX, sST, sA, sB, sWS = 24, 28, 32, 36, 40
    s_w = 50
    p(f"{name}:")
    p("s_cmp_ge_u32 s2, 256\ns_cbranch_scc1 L_k0_end")
    p("s_load_dwordx4 s[4:7], s[0:1], 0\ns_load_dwordx4 s[8:11], s[0:1], 16\ns_load_dwordx4 s[12:15], s[0:1], 40\ns_load_dwordx2 s[16:17], s[0:1], 56\ns_load_dwordx2 s[18:19], s[0:1], 80")
    p(f"v_lshrrev_b32 v1, 6, v0\ns_nop 0\nv_readfirstlane_b32 s{s_w}, v1\nv_and_b32 v1, 63, v0")
    p("s_waitcnt lgkmcnt(0)")
    st_.stamp()
    srd(p, sX, 4, 0, S * D * 2)
    srd(p, sST, 18, STATS_OFF, S * 8)
    job_stats(p, sX, sST, 2, s_w)
    p(f"s_lshl_b32 s52, s{s_w}, 8\ns_add_u32 s52, s52, s2")
    p(f"s_cmp_ge_u32 s{s_w}, 3\ns_cbranch_scc1 L_k0_nopack\ns_cmp_ge_u32 s52, 740\ns_cbranch_scc1 L_k0_nopack")
    p("s_mul_hi_u32 s53, s52, 0x1999999a\ns_mul_i32 s54, s53, 10\ns_sub_u32 s54, s52, s54")
    p(f"s_lshl_b32 s55, s{s_w}, 12")
    p("v_lshrrev_b32 v40, 3, v1\nv_and_b32 v41, 7, v1\nv_lshlrev_b32 v41, 4, v41")
    p("s_lshl_b32 s56, s54, 7\nv_add_u32 v41, s56, v41")
    p("s_cmp_ge_u32 s53, 54\ns_cbranch_scc1 L_k0_wo")
    srd(p, sA, 16, 0, F * D * 2)
    for i in range(4):
        p(f"s_lshl_b32 s56, s53, 5\ns_add_u32 s56, s56, {8*i}\nv_add_u32 v42, s56, v40\nv_mul_u32_u24 v42, 1280, v42\nv_add_u32 v42, v42, v41")
        p(f"s_add_u32 m0, s55, {1024*i}\ns_nop 0\nbuffer_load_dwordx4 v42, s[{sA}:{sA+3}], 0 offen lds")
    p("s_branch L_k0_loaded")
    p("L_k0_wo:")
    srd(p, sA, 10, 0, D * D * 2)
    for i in range(4):
        p(f"s_sub_u32 s56, s53, 54\ns_lshl_b32 s56, s56, 2\ns_add_u32 s56, s56, {i}")
        p("s_mul_hi_u32 s57, s56, 0x33333334\ns_mul_i32 s58, s57, 5\ns_sub_u32 s58, s56, s58")
        p("s_mul_i32 s57, s57, 40\ns_lshr_b32 s59, s58, 1\ns_mul_i32 s59, s59, 20\ns_and_b32 s62, s58, 1\ns_mul_i32 s62, s62, 10\ns_add_u32 s59, s59, s62\ns_add_u32 s59, s59, s57")
        p("v_add_u32 v42, s59, v40")
        p("v_lshrrev_b32 v43, 2, v40\nv_mul_u32_u24 v43, 20, v43\nv_bfe_u32 v44, v40, 1, 1\nv_mul_u32_u24 v44, 10, v44\nv_add_u32 v43, v43, v44\nv_and_b32 v44, 1, v40\nv_add3_u32 v43, v43, v44, 8\nv_add_u32 v43, s57, v43")
        p("s_cmp_eq_u32 s58, 4\ns_cselect_b64 vcc, -1, 0\nv_cndmask_b32 v42, v42, v43, vcc")
        p("v_mul_u32_u24 v42, 1280, v42\nv_add_u32 v42, v42, v41")
        p(f"s_add_u32 m0, s55, {1024*i}\ns_nop 0\nbuffer_load_dwordx4 v42, s[{sA}:{sA+3}], 0 offen lds")
    p("L_k0_loaded:")
    p("s_waitcnt vmcnt(0)")
    p("v_lshrrev_b32 v42, 4, v1\nv_lshlrev_b32 v42, 3, v42\nv_bfe_u32 v43, v1, 2, 2\nv_add_u32 v42, v42, v43\nv_lshlrev_b32 v42, 7, v42")
    p("v_and_b32 v43, 3, v1\nv_lshlrev_b32 v43, 3, v43\nv_add_u32 v42, v42, v43\nv_add_u32 v42, s55, v42")
    for ft in range(4):
        p(f"ds_read_b64_tr_b16 v[{48+4*ft}:{49+4*ft}], v42 offset:{32*ft}\nds_read_b64_tr_b16 v[{50+4*ft}:{51+4*ft}], v42 offset:{32*ft+512}")
    srd(p, sB, 18, W2P_OFF, 8 * NS_ALL * 5120)
    p("v_lshlrev_b32 v43, 4, v1")
    for ft in range(4):
        p(f"s_lshl_b32 s56, s54, 2\ns_add_u32 s56, s56, {ft}")
        p("s_mul_hi_u32 s57, s56, 0x33333334\ns_mul_i32 s58, s57, 5\ns_sub_u32 s58, s56, s58")
        p(f"s_mul_i32 s57, s57, {NS_ALL}\ns_add_u32 s57, s57, s53\ns_mul_i32 s57, s57, 5120\ns_lshl_b32 s58, s58, 10\ns_add_u32 s57, s57, s58")
        p(f"buffer_store_dwordx4 v[{48+4*ft}:{51+4*ft}], v43, s[{sB}:{sB+3}], s57 offen")
    p("L_k0_nopack:")
    p("s_waitcnt vmcnt(0) lgkmcnt(0)")
    job_stats_finish(p, sST)
    p(f"s_cmp_lg_u32 s{s_w}, 3\ns_cbranch_scc1 L_k0_nophi\ns_sub_u32 s52, s2, 84\ns_cmp_ge_u32 s52, 32\ns_cbranch_scc1 L_k0_nophi")
    p("s_mul_i32 s53, s52, 800")
    srd(p, sA, 8, "s53", 800)
    p("v_and_b32 v40, 31, v1\nv_lshrrev_b32 v41, 3, v40\nv_lshlrev_b32 v41, 2, v41\nv_and_b32 v42, 3, v40\nv_add_u32 v41, v41, v42")
    p("v_bfe_u32 v42, v40, 2, 1\nv_mul_u32_u24 v42, 10, v42\nv_add_u32 v42, v42, v41\nv_lshlrev_b32 v42, 1, v42")
    p(f"v_cmp_gt_u32 vcc, 10, v41\nv_mov_b32 v43, {OOB}\nv_cndmask_b32 v42, v43, v42, vcc")
    p("v_lshrrev_b32 v44, 5, v1\nv_mul_u32_u24 v45, 160, v44\nv_add_u32 v45, v45, v42")
    p(f"v_cmp_eq_u32 vcc, 0, v44\nv_cndmask_b32 v46, v43, v42, vcc")
    for e in range(8):
        d = e if e < 4 else e + 4
        p(f"buffer_load_ushort v{64+e}, v45, s[{sA}:{sA+3}], 0 offen offset:{d*40}")
    for e in range(4):
        p(f"buffer_load_ushort v{72+e}, v46, s[{sA}:{sA+3}], 0 offen offset:{(16+e)*40}")
    for k in range(6):
        p(f"v_lshl_or_b32 v{48+k}, v{65+2*k}, 16, v{64+2*k}")
    p("v_mov_b32 v54, 0\nv_mov_b32 v55, 0")
    p(f"s_lshl_b32 s53, s52, 11\ns_add_u32 s53, s53, {APHI_OFF}")
    srd(p, sB, 18, "s53", 2048)
    p("v_lshlrev_b32 v43, 4, v1")
    p(f"buffer_store_dwordx4 v[48:51], v43, s[{sB}:{sB+3}], 0 offen\nbuffer_store_dwordx4 v[52:55], v43, s[{sB}:{sB+3}], 0 offen offset:1024")
    p("L_k0_nophi:")
    p("s_cmp_lg_u32 s2, 255\ns_cbranch_scc1 L_k0_noflag")
    srd(p, sB, 18, FLAG_OFF, 4096)
    p("v_lshlrev_b32 v43, 4, v0\nv_mov_b32 v48, 0\nv_mov_b32 v49, 0\nv_mov_b32 v50, 0\nv_mov_b32 v51, 0")
    p(f"buffer_store_dwordx4 v[48:51], v43, s[{sB}:{sB+3}], 0 offen")
    p("L_k0_noflag:")
    p("s_cmp_ge_u32 s2, 84\ns_cbranch_scc1 L_k0_done")
    p("s_cmp_lt_u32 s2, 30\ns_cbranch_scc1 L_k0_cq\ns_cmp_lt_u32 s2, 57\ns_cbranch_scc1 L_k0_cg")
    p("s_sub_u32 s52, s2, 57\ns_mov_b32 s53, 3456")
    srd(p, sA, 14, 0, D * F * 2)
    p("s_branch L_k0_cs")
    p("L_k0_cg:\ns_sub_u32 s52, s2, 30\ns_mov_b32 s53, 3456")
    srd(p, sA, 12, 0, D * F * 2)
    p("s_branch L_k0_cs")
    p("L_k0_cq:\ns_mov_b32 s52, s2\ns_mov_b32 s53, 3840")
    srd(p, sA, 6, 0, D * 3 * D * 2)
    p("L_k0_cs:")
    p("v_lshrrev_b32 v40, 3, v0\nv_mul_lo_u32 v40, s53, v40\nv_and_b32 v41, 7, v0\nv_lshlrev_b32 v41, 4, v41\nv_add_u32 v40, v40, v41")
    p("s_lshl_b32 s54, s52, 7\ns_lshl_b32 s55, s53, 5")
    for i in range(20):
        p(f"buffer_load_dwordx4 v[{64+4*i}:{67+4*i}], v40, s[{sA}:{sA+3}], s54 offen\ns_add_u32 s54, s54, s55")
    for e in range(8):
        p(f"v_mov_b32 v{48+e}, 0")
    for i in range(20):
        for d in range(4):
            p(f"v_lshlrev_b32 v42, 16, v{64+4*i+d}\nv_and_b32 v43, 0xffff0000, v{64+4*i+d}")
            p(f"v_add_f32 v{48+2*d}, v{48+2*d}, v42\nv_add_f32 v{49+2*d}, v{49+2*d}, v43")
    for e in range(8):
        p(f"v_add_f32_dpp v{48+e}, v{48+e}, v{48+e} row_ror:8 row_mask:0xf bank_mask:0xf")
    for e in range(8):
        swap_add(p, 48 + e, 42, 16)
        swap_add(p, 48 + e, 42, 32)
    p(f"s_barrier")
    p(f"s_lshl_b32 s55, s{s_w}, 8\nv_and_b32 v41, 7, v1\nv_lshlrev_b32 v41, 5, v41\nv_add_u32 v41, s55, v41")
    p("ds_write_b128 v41, v[48:51]\nds_write_b128 v41, v[52:55] offset:16")
    p("s_waitcnt lgkmcnt(0)\ns_barrier")
    p("v_lshlrev_b32 v41, 2, v1")
    for w in range(4):
        p(f"ds_read_b32 v{48+w}, v41 offset:{256*w}")
    p("v_add_f32 v48, v48, v49\nv_add_f32 v50, v50, v51\nv_add_f32 v48, v48, v50")
    p(f"s_lshl_b32 s55, s2, 8\ns_add_u32 s55, s55, {CS_OFF}")
    srd(p, sB, 18, "s55", 256)
    p(f"buffer_store_dword v48, v41, s[{sB}:{sB+3}], 0 offen")
    p("L_k0_done:")
    if prof:
        p("s_waitcnt vmcnt(0)")
    st_.stamp()
    st_.flush(18, 0, s_w)
    p("L_k0_end:\ns_endpgm")
    return p.finish(), dict(n=len(p.items), nops=p.nops_added)

if __name__ == "__main__":
    import k2gen
    b, i = gen_k0(); print(i)
    open("k0.s", "w").write(k2gen.wrap([("k0_kernel", b, 256, 256, 16384, 160, 160)]))
```

```python
from asmb import Prog, L, Ins, Need, Gap, Mark, Sched
from layout import *
from k2gen import srd, OOB, Stamps, softmax_phi

NB = 6
NPG = 11
N_FFN = 14 * NPG
N_ATT = 8 * NPG

sX, sWa, sWb, sST, sCS, sO1, sO2 = 20, 24, 28, 32, 36, 40, 44
s_w, s_cb, s_pg, s_b0 = 50, 51, 52, 53
s_w1k, s_w2k = 54, 55
s_xbase, s_wbase = 56, 57
s_t0, s_t1, s_t2 = 58, 59, 60
s_so, s_st = 61, 62
s_out = 63
s_st2 = 64


class Variant:
    def __init__(self, kind):
        self.kind = kind
        self.R = 3 if kind == "ffn" else 2
        R = self.R
        self.RR = R + 8
        v = 2
        def alloc(n, align=1):
            nonlocal v
            v = (v + align - 1) // align * align
            b = v
            v += n
            return b
        self.vXD = alloc(2)
        self.vXA = alloc(8)
        self.vSTo = alloc(1)
        self.vOut = alloc(2)
        self.nXF = 6 if R == 3 else 4
        self.XF = alloc(4 * self.nXF, 4)
        self.ACC = alloc(32 * R, 4)
        self.WV = alloc(64, 4)
        self.AX = alloc(8, 4)
        self.BX = alloc(4, 4)
        self.nST = 6 if kind == 'ffn' else 3
        self.ST = alloc(2 * self.nST, 2)
        if kind == "att":
            self.APH = alloc(8, 4)
            self.KV = alloc(24, 4)
            self.vPW, self.vVW, self.vVW2, self.vPA, self.vVA = [alloc(1) for _ in range(5)]
        self.T = alloc(0, 4)
        self.vWD = self.T
        self.vWT = self.T + 2
        self.nT = 256 - self.T

    def acc(self, st, tau):
        b = self.ACC + 32 * st + 16 * tau
        return b

    def wfrag(self, tau, s):
        if s < 32:
            b = (2 * s + tau) * 4
            return "a", b
        return "v", self.WV + (2 * (s - 32) + tau) * 4

    def item_x(self, b, g):
        return self.RR * g + b

    def item_w(self, s):
        return self.RR * (s >> 3) + self.R + (s & 7)

    def late_regions(self, b):
        if self.R == 3:
            return {3: 15, 4: 0, 5: 5}[b]
        return {2: 10, 3: 15, 4: 0, 5: 10}[b]


def rng(c, b, n):
    return f"{c}[{b}:{b+n-1}]"


def dma_x(V, b, g, region, tok):
    o = L(f"s_add_u32 s{s_so}, s{s_xbase}, {b*40960 + g*256}")
    for i in range(2):
        o += L(f"s_add_u32 m0, s{s_w2k}, {region*8192 + i*1024}")
        o += [Ins(f"buffer_load_dwordx4 v{V.vXD+i}, s[{sX}:{sX+3}], s{s_so} offen lds", tok=tok)]
    return o


def dma_w(V, s, region, tok):
    o = []
    if V.kind == "ffn":
        o += L(f"s_add_u32 s{s_so}, s{s_wbase}, {s*16*3456}")
        o += L(f"s_add_u32 m0, s{s_w1k}, {region*8192}")
        o += [Ins(f"buffer_load_dwordx4 v{V.vWD}, s[{sWa}:{sWa+3}], s{s_so} offen lds", tok=tok)]
        o += L(f"s_add_u32 m0, s{s_w1k}, {region*8192+4096}")
        o += [Ins(f"buffer_load_dwordx4 v{V.vWD+1}, s[{sWb}:{sWb+3}], s{s_so} offen lds", tok=tok)]
    else:
        o += L(f"s_add_u32 s{s_so}, s{s_wbase}, {s*16*3840}")
        for i in range(2):
            o += L(f"s_add_u32 m0, s{s_w2k}, {region*8192 + i*1024}")
            o += [Ins(f"buffer_load_dwordx4 v{V.vWD+i}, s[{sWa}:{sWa+3}], s{s_so} offen lds", tok=tok)]
    return o


def w_reads(V, s):
    region = V.item_w(s) % 20
    rowstep = 1024 if V.kind == "ffn" else 2048
    o = []
    for tau in range(2):
        c, b = V.wfrag(tau, s)
        a = V.vWT + 3 * tau + (region >> 3)
        for x in range(2):
            o.append(Ins(f"ds_read_b64_tr_b16 {c}[{b+2*x}:{b+2*x+1}], v{a} offset:{(region & 7)*8192 + x*rowstep}"))
    return o


def stats_load(V, b):
    r = V.ST + 2 * (b % V.nST)
    return L(f"s_add_u32 s{s_st2}, s{s_b0}, {b}\ns_lshl_b32 s{s_st2}, s{s_st2}, 8") + \
        [Ins(f"buffer_load_dwordx2 v[{r}:{r+1}], v{V.vSTo}, s[{sST}:{sST+3}], s{s_st2} offen")]


def init_acc(V, b, st):
    m = V.ST + 2 * (b % V.nST)
    B = V.BX
    o = L(f"v_cvt_pk_bf16_f32 v{B}, -v{m}, -v{m}\nv_lshlrev_b32 v{B+1}, 16, v{B}\nv_sub_f32 v{B+1}, -v{m}, v{B+1}\nv_cvt_pk_bf16_f32 v{B+1}, v{B+1}, 0".replace("v_sub_f32", "v_sub_f32_e64"))
    mf = [Ins(f"v_mfma_f32_32x32x16_bf16 {rng('v', V.acc(st,t), 16)}, {rng('v', V.AX+4*t, 4)}, {rng('v', B, 4)}, 0") for t in range(2)]
    return o, mf


def epi_ffn(V, b, st):
    r = V.ST + 2 * (b % V.nST) + 1
    T = V.T + 8
    rr = V.T + 16
    o = L(f"v_mul_f32 v{rr}, v{r}, v{r}")
    o += L(f"s_add_u32 s{s_st}, s{s_b0}, {b}\ns_mul_i32 s{s_st}, s{s_st}, {2*NS_F*1024}\ns_add_u32 s{s_st}, s{s_st}, s{s_out}")
    for tau in range(2):
        a = V.acc(st, tau)
        for e in range(8):
            o += L(f"v_max_f32 v{a+e}, 0, v{a+e}\nv_mul_f32 v{a+8+e}, v{a+8+e}, v{rr}")
        for e in range(8):
            o += L(f"v_mul_f32 v{a+e}, v{a+e}, v{a+8+e}")
        t = T + 4 * tau
        for k in range(4):
            o += L(f"v_cvt_pk_bf16_f32 v{t+k}, v{a+2*k}, v{a+2*k+1}")
        o += [Ins(f"buffer_store_dwordx4 v[{t}:{t+3}], v{V.vOut}, s[{sO1}:{sO1+3}], s{s_st} offen offset:{512*tau} sc1")]
    return o


def epi_att(V, b, st):
    r = V.ST + 2 * (b % V.nST) + 1
    A, Bq = V.acc(st, 0), V.acc(st, 1)
    T = V.T
    PB, PH, c, one, PV = T, T + 8, T + 24, T + 25, T + 26
    o = []
    def phi(src):
        q = []
        for k in range(8):
            q += L(f"v_cvt_pk_bf16_f32 v{PB+k}, v{src+2*k}, v{src+2*k+1}")
        q += [Ins(f"v_mfma_f32_32x32x16_bf16 {rng('v',PH,16)}, {rng('v',V.APH,4)}, {rng('v',PB,4)}, 0"),
              Ins(f"v_mfma_f32_32x32x16_bf16 {rng('v',PH,16)}, {rng('v',V.APH+4,4)}, {rng('v',PB+4,4)}, {rng('v',PH,16)}")]
        return q
    o += phi(A)
    o += L(f"v_mul_f32 v{c}, 0x3fb8aa3b, v{r}")
    for k in range(8, 16):
        o += L(f"v_mul_f32 v{A+k}, v{A+k}, v{r}")
    for k in range(12, 16):
        o += L(f"v_mul_f32 v{PV+k-12}, v{Bq+k}, v{r}")
    o += L(f"v_cvt_pk_bf16_f32 v{PV+4}, v{PV}, v{PV+1}\nv_cvt_pk_bf16_f32 v{PV+5}, v{PV+2}, v{PV+3}")
    o += L(f"v_cvt_pk_bf16_f32 v{PV}, v{A+12}, v{A+13}\nv_cvt_pk_bf16_f32 v{PV+1}, v{A+14}, v{A+15}")
    o += L(f"v_cvt_pk_bf16_f32 v{PV+2}, v{A+8}, v{A+9}\nv_cvt_pk_bf16_f32 v{PV+3}, v{A+10}, v{A+11}")
    o += L(f"v_cmp_lt_f32 vcc, 0, v{r}\nv_mov_b32 v{one}, 0x3f80\nv_cndmask_b32 v{one}, 0, v{one}, vcc")
    o += L(f"v_cmp_gt_u32 vcc, 32, v1\nv_cndmask_b32 v{PV+2}, v{PV+2}, v{one}, vcc\nv_cndmask_b32 v{PV+3}, v{PV+3}, 0, vcc")
    o += [Ins(f"ds_write_b64 v{V.vVW}, v[{PV}:{PV+1}]"), Ins(f"ds_write_b64 v{V.vVW2}, v[{PV+2}:{PV+3}]"),
          Ins(f"ds_write_b64 v{V.vVW}, v[{PV+4}:{PV+5}] offset:24")]
    for k in range(10):
        o += L(f"v_mul_f32 v{PH+k}, v{PH+k}, v{c}")
    o += L(f"s_add_u32 s{s_st}, s{s_b0}, {b}\ns_mul_i32 s{s_st}, s{s_st}, 2560")
    o += [Ins(f"buffer_store_dwordx4 v[{PH}:{PH+3}], v{V.vOut}, s[{sO1}:{sO1+3}], s{s_st} offen sc1"),
          Ins(f"buffer_store_dwordx4 v[{PH+4}:{PH+7}], v{V.vOut}, s[{sO1}:{sO1+3}], s{s_st} offen offset:1024 sc1"),
          Ins(f"buffer_store_dwordx2 v[{PH+8}:{PH+9}], v{V.vOut+1}, s[{sO1}:{sO1+3}], s{s_st} offen offset:2048 sc1")]
    o += phi(Bq)
    o += [Gap(2)]
    for k in range(10):
        o += L(f"v_mul_f32 v{PH+k}, v{PH+k}, v{c}")
    P = Bq
    o += softmax_phi(PH, P, T, ep=[A + i for i in range(10)], em=[A + 10 + i for i in range(6)] + [T + 4 + i for i in range(4)])
    o += [Ins(f"ds_write_b128 v{V.vPW}, v[{P}:{P+3}]"), Ins(f"ds_write_b128 v{V.vPW}, v[{P+4}:{P+7}] offset:32"),
          Ins(f"ds_write_b64 v{V.vPW}, v[{P+8}:{P+9}] offset:64")]
    FA, FB = A, T
    o += [Gap(1)]
    for bt in range(2):
        for x in range(2):
            o.append(Ins(f"ds_read_b64_tr_b16 v[{FB+4*bt+2*x}:{FB+4*bt+2*x+1}], v{V.vVA} offset:{x*4*72 + 32*bt}"))
    for a in range(3):
        for x in range(2):
            o.append(Ins(f"ds_read_b64_tr_b16 v[{FA+4*a+2*x}:{FA+4*a+2*x+1}], v{V.vPA} offset:{x*4*112 + 32*a}"))
    o += [Gap(3)]
    for a in range(3):
        for bt in range(2):
            kv = V.KV + 4 * (2 * a + bt)
            o.append(Ins(f"v_mfma_f32_16x16x32_bf16 v[{kv}:{kv+3}], v[{FA+4*a}:{FA+4*a+3}], v[{FB+4*bt}:{FB+4*bt+3}], v[{kv}:{kv+3}]"))
    return o


def gen_body(p, V, st_):
    R, RR = V.R, V.RR
    T = V.T
    ffn = V.kind == "ffn"
    lane = 1
    for i in range(2):
        p(f"v_lshrrev_b32 v{T}, 4, v{lane}\ns_lshl_b32 s{s_t0}, s{s_w}, 3\ns_add_u32 s{s_t0}, s{s_t0}, {4*i}\nv_add_u32 v{T}, s{s_t0}, v{T}")
        p(f"v_xor_b32 v{T+1}, v{lane}, v{T}\nv_and_b32 v{T+1}, 15, v{T+1}\nv_lshlrev_b32 v{T+1}, 4, v{T+1}")
        p(f"v_mul_u32_u24 v{T}, 1280, v{T}\nv_add_u32 v{V.vXD+i}, v{T}, v{T+1}")
    p(f"v_and_b32 v{T}, 31, v{lane}\nv_lshrrev_b32 v{T+1}, 5, v{lane}\nv_xor_b32 v{T+1}, v{T+1}, v{T}\nv_and_b32 v{T+1}, 15, v{T+1}\nv_lshlrev_b32 v{T+1}, 4, v{T+1}")
    p(f"v_lshl_add_u32 v{T+1}, v{T}, 8, v{T+1}")
    for s7 in range(8):
        p(f"v_xor_b32 v{V.vXA+s7}, {32*s7}, v{T+1}")
    p(f"v_lshlrev_b32 v{V.vSTo}, 3, v{T}")
    tmp = V.XF
    if ffn:
        p(f"v_lshrrev_b32 v{tmp}, 4, v{lane}\nv_lshlrev_b32 v{tmp+1}, 2, v{tmp}\nv_xor_b32 v{tmp+1}, v{tmp+1}, v{lane}\nv_and_b32 v{tmp+1}, 15, v{tmp+1}")
        p(f"s_lshl_b32 s{s_t0}, s{s_w}, 2\nv_add_u32 v{tmp}, s{s_t0}, v{tmp}\ns_movk_i32 s{s_t0}, 3456\nv_mul_lo_u32 v{tmp}, s{s_t0}, v{tmp}")
        p(f"v_lshl_add_u32 v{V.vWD}, v{tmp+1}, 4, v{tmp}\nv_xor_b32 v{tmp+1}, 2, v{tmp+1}\nv_lshl_add_u32 v{V.vWD+1}, v{tmp+1}, 4, v{tmp}")
        p(f"v_bfe_u32 v{tmp}, v{lane}, 2, 2")
        p(f"v_lshrrev_b32 v{tmp+1}, 5, v{lane}\nv_lshl_add_u32 v{tmp+1}, v{tmp+1}, 3, v{tmp}")
        p(f"v_bfe_u32 v{tmp+2}, v{lane}, 4, 1")
        p(f"v_and_b32 v{tmp+3}, 1, v{lane}")
        p(f"v_bfe_u32 v{tmp+4}, v{lane}, 1, 1")
        p(f"v_lshlrev_b32 v{tmp+5}, 2, v{tmp}\nv_lshl_add_u32 v{tmp+5}, v{tmp+2}, 1, v{tmp+5}")
        p(f"v_lshlrev_b32 v{tmp+6}, 12, v{tmp+2}\nv_lshl_add_u32 v{tmp+6}, v{tmp+1}, 8, v{tmp+6}\nv_lshl_add_u32 v{tmp+6}, v{tmp+4}, 3, v{tmp+6}")
        for tau in range(2):
            p(f"s_lshl_b32 s{s_t0}, s{s_w}, 2\ns_add_u32 s{s_t0}, s{s_t0}, {2*tau}\nv_add_u32 v{tmp+7}, s{s_t0}, v{tmp+3}")
            p(f"v_xor_b32 v{tmp+7}, v{tmp+7}, v{tmp+5}\nv_lshl_add_u32 v{V.vWT+3*tau}, v{tmp+7}, 4, v{tmp+6}")
        p(f"v_and_b32 v{tmp}, 3, v{lane}\nv_bfe_u32 v{tmp+1}, v{lane}, 2, 1\nv_lshl_add_u32 v{tmp}, v{tmp+1}, 3, v{tmp}")
        p(f"v_bfe_u32 v{tmp+1}, v{lane}, 3, 1\nv_lshl_add_u32 v{tmp}, v{tmp+1}, 2, v{tmp}")
        p(f"v_bfe_u32 v{tmp+1}, v{lane}, 4, 1\nv_mul_u32_u24 v{tmp+1}, {F}, v{tmp+1}\nv_add_u32 v{tmp}, v{tmp}, v{tmp+1}")
        p(f"s_lshl_b32 s{s_t0}, s{s_cb}, 7\ns_lshl_b32 s{s_t1}, s{s_w}, 5\ns_add_u32 s{s_t0}, s{s_t0}, s{s_t1}\ns_add_u32 s{s_t0}, s{s_t0}, {3*D}")
        p(f"v_add_u32 v{tmp}, s{s_t0}, v{tmp}\nv_lshlrev_b32 v{tmp}, 2, v{tmp}")
        cs_step = 64
        p(f"v_bfe_u32 v{tmp+1}, v{lane}, 4, 1\nv_mul_u32_u24 v{tmp+1}, {NS_F*1024}, v{tmp+1}\nv_lshrrev_b32 v{tmp+2}, 5, v{lane}\nv_lshl_add_u32 v{tmp+1}, v{tmp+2}, 8, v{tmp+1}")
        p(f"v_and_b32 v{tmp+2}, 15, v{lane}\nv_lshl_add_u32 v{V.vOut}, v{tmp+2}, 4, v{tmp+1}")
        p(f"s_lshl_b32 s{s_out}, s{s_cb}, 2\ns_add_u32 s{s_out}, s{s_out}, s{s_w}\ns_cmp_ge_u32 s{s_out}, {NS_F}\ns_cselect_b32 s{s_t0}, {OOB}, 0\ns_lshl_b32 s{s_out}, s{s_out}, 10\ns_add_u32 s{s_out}, s{s_out}, s{s_t0}")
        p(f"s_lshl_b32 s{s_wbase}, s{s_cb}, 8")
    else:
        for i in range(2):
            p(f"v_lshrrev_b32 v{tmp}, 5, v{lane}\nv_add_u32 v{tmp}, {2*i}, v{tmp}")
            p(f"v_lshlrev_b32 v{tmp+1}, 2, v{tmp}\nv_and_b32 v{tmp+2}, 31, v{lane}\nv_xor_b32 v{tmp+1}, v{tmp+1}, v{tmp+2}")
            p(f"v_mul_u32_u24 v{tmp+2}, 6554, v{tmp+1}\nv_lshrrev_b32 v{tmp+2}, 16, v{tmp+2}")
            p(f"v_mul_u32_u24 v{tmp+3}, 1120, v{tmp+2}\nv_lshl_add_u32 v{tmp+3}, v{tmp+1}, 4, v{tmp+3}")
            p(f"s_lshl_b32 s{s_t0}, s{s_w}, 2\nv_add_u32 v{tmp}, s{s_t0}, v{tmp}\nv_mul_u32_u24 v{tmp}, 3840, v{tmp}\nv_add_u32 v{tmp}, v{tmp}, v{tmp+3}")
            p(f"v_cmp_gt_u32 vcc, 30, v{tmp+1}\nv_mov_b32 v{tmp+2}, {OOB}\nv_cndmask_b32 v{V.vWD+i}, v{tmp+2}, v{tmp}, vcc")
        def beta(dst, slot, tau, t):
            p(f"v_lshrrev_b32 v{t}, 1, v{slot}\nv_and_b32 v{t+1}, 1, v{slot}")
            p(f"v_lshl_add_u32 v{t+2}, v{t}, 1, v{t+1}\nv_lshlrev_b32 v{t+2}, 3, v{t+2}\nv_add_u32 v{t+2}, {160*tau}, v{t+2}")
            if tau == 0:
                p(f"v_lshlrev_b32 v{t+3}, 3, v{t+1}\nv_add_u32 v{t+3}, 320, v{t+3}")
                p(f"v_mov_b32 v{dst}, {320+16}")
            else:
                p(f"v_lshlrev_b32 v{t+3}, 3, v{t+1}\nv_add_u32 v{t+3}, {320+24}, v{t+3}")
                p(f"v_mov_b32 v{dst}, {320+32}")
            p(f"v_cmp_gt_u32 vcc, 5, v{slot}\nv_cndmask_b32 v{dst}, v{dst}, v{t+2}, vcc")
            p(f"v_cmp_lt_u32 vcc, 5, v{slot}\nv_cndmask_b32 v{dst}, v{dst}, v{t+3}, vcc")
            p(f"s_mul_i32 s{s_t0}, s{s_w}, 40\nv_add_u32 v{dst}, s{s_t0}, v{dst}")
        p(f"v_bfe_u32 v{tmp}, v{lane}, 4, 1\nv_and_b32 v{tmp+1}, 3, v{lane}\nv_lshl_add_u32 v{tmp}, v{tmp}, 2, v{tmp+1}")
        p(f"v_bfe_u32 v{tmp+1}, v{lane}, 2, 2")
        p(f"v_lshrrev_b32 v{tmp+2}, 5, v{lane}\nv_lshl_add_u32 v{tmp+2}, v{tmp+2}, 3, v{tmp+1}\nv_lshlrev_b32 v{tmp+2}, 9, v{tmp+2}")
        for tau in range(2):
            beta(tmp + 3, tmp, tau, tmp + 8)
            p(f"v_lshlrev_b32 v{tmp+4}, 6, v{tmp+1}\nv_xor_b32 v{tmp+4}, v{tmp+4}, v{tmp+3}\nv_add_u32 v{V.vWT+3*tau}, v{tmp+4}, v{tmp+2}")
        p(f"v_bfe_u32 v{tmp+12}, v{lane}, 2, 3")
        for tau in range(2):
            beta(tmp + 3, tmp + 12, tau, tmp + 8)
            p(f"v_mul_u32_u24 v{tmp+4}, 410, v{tmp+3}\nv_lshrrev_b32 v{tmp+4}, 16, v{tmp+4}")
            p(f"v_mul_u32_u24 v{tmp+4}, 560, v{tmp+4}\nv_lshrrev_b32 v{tmp+3}, 1, v{tmp+3}\nv_add_u32 v{tmp+3}, v{tmp+3}, v{tmp+4}")
            p(f"v_and_b32 v{tmp+4}, 3, v{lane}\nv_add_u32 v{tmp+3}, v{tmp+3}, v{tmp+4}\ns_mul_i32 s{s_t0}, s{s_cb}, 80\nv_add_u32 v{tmp+3}, s{s_t0}, v{tmp+3}")
            p(f"v_lshlrev_b32 v{tmp+13+tau}, 2, v{tmp+3}")
        p(f"v_lshlrev_b32 v{V.vOut}, 4, v{lane}\nv_lshlrev_b32 v{V.vOut+1}, 3, v{lane}")
        p(f"s_mul_i32 s{s_wbase}, s{s_cb}, 160")
        p(f"s_mul_i32 s{s_t0}, s{s_w}, 6144\ns_add_u32 s{s_t0}, s{s_t0}, {5*8192}")
        p(f"v_and_b32 v{tmp}, 31, v{lane}\nv_lshrrev_b32 v{tmp+1}, 5, v{lane}")
        p(f"v_mul_u32_u24 v{V.vPW}, 112, v{tmp}\nv_lshl_add_u32 v{V.vPW}, v{tmp+1}, 4, v{V.vPW}\nv_add_u32 v{V.vPW}, s{s_t0}, v{V.vPW}")
        p(f"s_add_u32 s{s_t1}, s{s_t0}, 3584")
        p(f"v_mul_u32_u24 v{tmp+2}, 72, v{tmp}\nv_add_u32 v{tmp+2}, s{s_t1}, v{tmp+2}\nv_lshl_add_u32 v{V.vVW}, v{tmp+1}, 3, v{tmp+2}")
        p(f"v_mul_i32_i24 v{tmp+3}, -24, v{tmp+1}\nv_add_u32 v{tmp+3}, 40, v{tmp+3}\nv_add_u32 v{V.vVW2}, v{tmp+2}, v{tmp+3}")
        p(f"v_lshrrev_b32 v{tmp}, 4, v{lane}\nv_lshlrev_b32 v{tmp}, 3, v{tmp}\nv_bfe_u32 v{tmp+1}, v{lane}, 2, 2\nv_add_u32 v{tmp}, v{tmp}, v{tmp+1}")
        p(f"v_and_b32 v{tmp+1}, 3, v{lane}\nv_lshlrev_b32 v{tmp+1}, 3, v{tmp+1}")
        p(f"v_mul_u32_u24 v{V.vPA}, 112, v{tmp}\nv_add3_u32 v{V.vPA}, v{V.vPA}, v{tmp+1}, s{s_t0}")
        p(f"v_mul_u32_u24 v{V.vVA}, 72, v{tmp}\nv_add3_u32 v{V.vVA}, v{V.vVA}, v{tmp+1}, s{s_t1}")
    for tau in range(2):
        p(f"v_add_u32 v{V.vWT+3*tau+1}, 0x10000, v{V.vWT+3*tau}\nv_add_u32 v{V.vWT+3*tau+2}, 0x20000, v{V.vWT+3*tau}")
    p(f"s_mul_i32 s{s_xbase}, s{s_b0}, 40960")
    p(f"v_cmp_gt_u32 vcc, 32, v{lane}\nv_mov_b32 v{tmp+16}, {OOB}")
    if ffn:
        p(f"v_cndmask_b32 v{tmp}, v{tmp+16}, v{tmp}, vcc")
        p(f"buffer_load_dword v{tmp+17}, v{tmp}, s[{sCS}:{sCS+3}], 0 offen\nbuffer_load_dword v{tmp+18}, v{tmp}, s[{sCS}:{sCS+3}], 0 offen offset:{cs_step}")
    else:
        for tau in range(2):
            p(f"v_cndmask_b32 v{tmp+13+tau}, v{tmp+16}, v{tmp+13+tau}, vcc")
            p(f"buffer_load_dword v{tmp+17+tau}, v{tmp+13+tau}, s[{sCS}:{sCS+3}], 0 offen")
    for b in range(min(V.nST, NB)):
        p.extend(stats_load(V, b))
    if not ffn:
        p(f"buffer_load_dwordx4 v[{V.APH}:{V.APH+3}], v{V.vOut}, s[{sO2}:{sO2+3}], 0 offen\nbuffer_load_dwordx4 v[{V.APH+4}:{V.APH+7}], v{V.vOut}, s[{sO2}:{sO2+3}], 0 offen offset:1024")
        for r in range(24):
            p(f"v_mov_b32 v{V.KV+r}, 0")
    nfill = 5 * RR
    items = {}
    for g in range(5):
        for b in range(R):
            items[V.item_x(b, g)] = ("x", b, g)
        for s7 in range(8):
            items[V.item_w(8 * g + s7)] = ("w", 8 * g + s7)
    def issue(n):
        it = items[n]
        if it[0] == "x":
            return dma_x(V, it[1], it[2], n % 20, f"it{n}")
        return dma_w(V, it[1], n % 20, f"it{n}")
    for n in range(20):
        p.extend(issue(n))
    st_.stamp()
    for tau in range(2):
        cs = tmp + 17 + tau
        a = V.AX + 4 * tau
        p(f"v_cvt_pk_bf16_f32 v{a+1}, v{cs}, 0\nv_lshlrev_b32 v{a}, 16, v{a+1}\nv_sub_f32 v{a}, v{cs}, v{a}\nv_cvt_pk_bf16_f32 v{a}, v{cs}, v{a}\nv_mov_b32 v{a+2}, 0\nv_mov_b32 v{a+3}, 0")
    p(f"v_mov_b32 v{V.BX+2}, 0\nv_mov_b32 v{V.BX+3}, 0")
    for b in range(R):
        pre, mf = init_acc(V, b, b)
        p.extend(pre); p.extend(mf)
    sc = Sched(p)
    def free_phase(n):
        it = items[n]
        return (it[1] >> 1) + 1 if it[0] == "w" else 4 * it[2] + 4
    issue_at = {}
    prev = 0
    for n in range(20, nfill):
        prev = max(prev, free_phase(n - 20))
        issue_at[n] = prev
    def phase_items(ph):
        o = [V.item_w(2 * ph), V.item_w(2 * ph + 1)]
        if ph % 4 == 0:
            o += [V.item_x(b, ph >> 2) for b in range(R)]
        return o
    def x_reads(s):
        g, s7 = s >> 3, s & 7
        base = V.item_x(0, g) % 20
        o = []
        for b in range(R):
            f = V.XF + 4 * ((s & 1) * R + b)
            o.append(Ins(f"ds_read_b128 v[{f}:{f+3}], v{V.vXA+s7} offset:{b*8192}"))
        nxt = (V.item_x(0, g + 1) % 20 if g < 4 else V.late_regions(R)) - base
        o.append(Ins(f"v_add_u32 v{V.vXA+s7}, {nxt*8192 & 0xffffffff}, v{V.vXA+s7}"))
        return o
    late = [(b, g) for b in range(R, NB) for g in range(5)]
    def late_tok(b): return f"xb{b}"
    holder = {}
    for n in range(nfill):
        holder[n % 20] = n
    late_at = {}
    for (b, g) in late:
        reg = V.late_regions(b) + g
        first_user = all(V.late_regions(bb) != V.late_regions(b) for bb in range(R, b))
        late_at[(b, g)] = free_phase(holder[reg]) if first_user else None
    for n in phase_items(0) + phase_items(1):
        p.need(f"it{n}")
    p("s_barrier")
    base0 = V.item_x(0, 0) % 20
    assert base0 == 0
    for it in w_reads(V, 0) + x_reads(0):
        p.add(it)
    late_done = set()
    for s in range(40):
        ph = s >> 1
        if s & 1 == 0 and ph >= 1:
            if ph + 1 < 20:
                for n in phase_items(ph + 1):
                    p.need(f"it{n}")
            p("s_barrier")
            for n in sorted(issue_at):
                if issue_at[n] == ph:
                    sc.push(issue(n))
            for (b, g) in late:
                if late_at[(b, g)] is not None and late_at[(b, g)] <= ph and (b, g) not in late_done:
                    late_done.add((b, g))
                    sc.push(dma_x(V, b, g, V.late_regions(b) + g, late_tok(b)))
        rd = (w_reads(V, s + 1) + x_reads(s + 1)) if s + 1 < 40 else []
        grps = []
        k = 0
        for tau in range(2):
            c, wb = V.wfrag(tau, s)
            for b in range(R):
                f = V.XF + 4 * ((s & 1) * R + b)
                a = V.acc(b, tau)
                g = [Ins(f"v_mfma_f32_32x32x16_bf16 v[{a}:{a+15}], {c}[{wb}:{wb+3}], v[{f}:{f+3}], v[{a}:{a+15}]")]
                per = -(-len(rd) // (2 * R))
                g += rd[k:k + per]; k += per
                grps.append(g)
        for g in grps:
            sc.group(g)
    sc.flush()
    st_.stamp()
    epi = epi_ffn if ffn else epi_att
    p("s_barrier")
    for (b, g) in late:
        if late_at[(b, g)] is not None and (b, g) not in late_done:
            late_done.add((b, g))
            p.extend(dma_x(V, b, g, V.late_regions(b) + g, late_tok(b)))
    nsets = R
    for it in epi(V, 0, 0):
        if it.kind not in ("gap", "mark"):
            p.add(it)
    pending = list(range(1, R))
    for b in pending:
        sc.push(epi(V, b, b) + [Mark(f"e{b}")])
    NXR = 5 if V.nXF >= 5 else 4
    def xr(b, s):
        f = V.XF + 4 * (s % NXR)
        o = [Ins(f"ds_read_b128 v[{f}:{f+3}], v{V.vXA+(s&7)} offset:{(s>>3)*8192}")]
        if s >= 32 and b + 1 < NB:
            d = V.late_regions(b + 1) - V.late_regions(b)
            o.append(Ins(f"v_add_u32 v{V.vXA+(s&7)}, {d*8192 & 0xffffffff}, v{V.vXA+(s&7)}"))
        return o
    PFD = NXR - 1
    p.need(late_tok(R))
    p("s_barrier")
    for s in range(PFD):
        p.extend(xr(R, s))
    for b in range(R, NB):
        stt = b % nsets
        sc.flush(f"e{b-nsets}")
        pre, mf = init_acc(V, b, stt)
        for it in pre:
            p.add(it)
        sc.group([mf[0]]); sc.group([mf[1]])
        if b + 1 < NB and b + 1 >= V.nST:
            sc.q[0:0] = stats_load(V, b + 1)
        for s in range(40):
            grp_extra = []
            nb, ns = (b, s + PFD) if s + PFD < 40 else (b + 1, s + PFD - 40)
            if nb < NB:
                if nb != b and ns == 0:
                    p.need(late_tok(nb))
                    p("s_barrier")
                    for (bb, g) in late:
                        if late_at[(bb, g)] is None and (bb, g) not in late_done and bb - 2 <= b - 0 and V.late_regions(bb) == V.late_regions(b - 1):
                            late_done.add((bb, g))
                            sc.q[0:0] = dma_x(V, bb, g, V.late_regions(bb) + g, late_tok(bb))
                grp_extra = xr(nb, ns)
            f = V.XF + 4 * (s % NXR)
            for tau in range(2):
                c, wb = V.wfrag(tau, s)
                a = V.acc(stt, tau)
                g = [Ins(f"v_mfma_f32_32x32x16_bf16 v[{a}:{a+15}], {c}[{wb}:{wb+3}], v[{f}:{f+3}], v[{a}:{a+15}]")]
                if tau == 0:
                    g += grp_extra
                sc.group(g)
        sc.push(epi(V, b, stt) + [Mark(f"e{b}")])
        st_.stamp()
    sc.flush()
    assert len(late_done) == len(late), (late_done, late)
    if not ffn:
        p(f"v_and_b32 v{T}, 15, v{lane}\nv_mul_u32_u24 v{T+1}, 192, v{T}\nv_lshrrev_b32 v{T+2}, 4, v{lane}\nv_lshl_add_u32 v{T+1}, v{T+2}, 4, v{T+1}")
        p(f"v_cmp_gt_u32 vcc, 5, v{T}\nv_mov_b32 v{T+2}, {OOB}\nv_cndmask_b32 v{T+2}, v{T+2}, v{T+1}, vcc")
        p(f"s_lshl_b32 s{s_t0}, s{s_cb}, 4\ns_add_u32 s{s_t0}, s{s_t0}, s{s_pg}\ns_lshl_b32 s{s_t0}, s{s_t0}, 2\ns_add_u32 s{s_t0}, s{s_t0}, s{s_w}\ns_lshl_b32 s{s_t0}, s{s_t0}, 12")
        p(f"s_add_u32 s{s_t0}, s{s_t0}, {KVP_OFF}")
        srd(p, sWa, 18, f"s{s_t0}", 4096)
        for a in range(3):
            for bt in range(2):
                kv = V.KV + 4 * (2 * a + bt)
                p(f"buffer_store_dwordx4 v[{kv}:{kv+3}], v{T+1+bt}, s[{sWa}:{sWa+3}], 0 offen offset:{64*a + 3072*bt} sc1")


def gen_k1(name="k1_kernel", prof=False):
    p = Prog()
    st_ = Stamps(p, prof, first=68)
    p(f"{name}:")
    p(f"s_and_b32 s3, s2, 7\ns_lshl_b32 s3, s3, 5\ns_lshr_b32 s4, s2, 3\ns_add_u32 s3, s3, s4")
    p(f"s_cmp_ge_u32 s2, 256\ns_cbranch_scc1 L_k1_end\ns_cmp_ge_u32 s3, {N_FFN+N_ATT}\ns_cbranch_scc1 L_k1_end")
    p("s_load_dwordx4 s[4:7], s[0:1], 0\ns_load_dwordx4 s[12:15], s[0:1], 40\ns_load_dwordx2 s[18:19], s[0:1], 80")
    p(f"v_lshrrev_b32 v1, 6, v0\ns_nop 0\nv_readfirstlane_b32 s{s_w}, v1\nv_and_b32 v1, 63, v0")
    p(f"s_lshl_b32 s{s_w1k}, s{s_w}, 10\ns_lshl_b32 s{s_w2k}, s{s_w}, 11")
    p(f"s_cmp_ge_u32 s3, {N_FFN}\ns_cselect_b32 s{s_t0}, {N_FFN}, 0\ns_sub_u32 s{s_t0}, s3, s{s_t0}")
    p(f"s_mul_hi_u32 s{s_cb}, s{s_t0}, {(2**32+10)//11}\ns_mul_i32 s{s_t1}, s{s_cb}, 11\ns_sub_u32 s{s_pg}, s{s_t0}, s{s_t1}\ns_mul_i32 s{s_b0}, s{s_pg}, {NB}")
    p("s_waitcnt lgkmcnt(0)")
    st_.stamp()
    srd(p, sX, 4, 0, S * D * 2)
    srd(p, sST, 18, STATS_OFF, S * 8)
    srd(p, sCS, 18, CS_OFF, (3 * D + 2 * F) * 4)
    p(f"s_cmp_ge_u32 s3, {N_FFN}\ns_cbranch_scc1 L_k1_att")
    srd(p, sWa, 12, 0, D * F * 2)
    srd(p, sWb, 14, 0, D * F * 2)
    srd(p, sO1, 18, H_OFF, NTB16 * NS_F * 1024)
    n0 = st_.n
    gen_body(p, Variant("ffn"), st_)
    if prof:
        p("s_waitcnt vmcnt(0)")
    st_.stamp()
    p("s_branch L_k1_fin")
    p.settle()
    p("L_k1_att:")
    p("s_waitcnt vmcnt(0) lgkmcnt(0)")
    st_.n = n0
    srd(p, sWa, 6, 0, D * 3 * D * 2)
    p(f"s_lshl_b32 s{s_t0}, s{s_cb}, 2\ns_add_u32 s{s_t0}, s{s_t0}, s{s_w}")
    p(f"s_mul_i32 s{s_t1}, s{s_t0}, {NB32*2560}\ns_add_u32 s{s_t1}, s{s_t1}, {LOG_OFF}")
    srd(p, sO1, 18, f"s{s_t1}", NB32 * 2560)
    p(f"s_lshl_b32 s{s_t1}, s{s_t0}, 11\ns_add_u32 s{s_t1}, s{s_t1}, {APHI_OFF}")
    srd(p, sO2, 18, f"s{s_t1}", 2048)
    gen_body(p, Variant("att"), st_)
    if prof:
        p("s_waitcnt vmcnt(0)")
    st_.stamp()
    p("L_k1_fin:")
    st_.flush(18, 1, s_w)
    p("L_k1_end:\ns_endpgm")
    body = p.finish()
    return body, dict(n=len(p.items), nops=p.nops_added, waits=p.waits_added, stamps=st_.n)


if __name__ == "__main__":
    import k2gen
    for k in ("ffn", "att"):
        V = Variant(k); print(k, "temps start", V.T, "count", V.nT)
    b, i = gen_k1(); print(i)
    open("k1.s", "w").write(k2gen.wrap([("k1_kernel", b, 256, 256, 163840, 512, 256)]))
```

```python
from asmb import Prog, L, Ins, Need
from layout import *

OOB = 0x40000000

def srd(p, base_s, ptr_lo, off_expr_s, size):
    p(f"s_add_u32 s{base_s}, s{ptr_lo}, {off_expr_s}")
    p(f"s_addc_u32 s{base_s+1}, s{ptr_lo+1}, 0")
    p(f"s_mov_b32 s{base_s+2}, {size}")
    p(f"s_mov_b32 s{base_s+3}, 0x20000")

def softmax_phi(Lr, P, T, ep=None, em=None):
    o = []
    mx, mn, t0, t1 = T, T + 1, T + 2, T + 3
    ep = ep or [T + 4 + r for r in range(10)]
    em = em or [T + 14 + r for r in range(10)]
    o += L(f"v_max3_f32 v{mx}, v{Lr}, v{Lr+1}, v{Lr+2}\nv_min3_f32 v{mn}, v{Lr}, v{Lr+1}, v{Lr+2}")
    for r in (3, 5, 7):
        o += L(f"v_max3_f32 v{mx}, v{mx}, v{Lr+r}, v{Lr+r+1}\nv_min3_f32 v{mn}, v{mn}, v{Lr+r}, v{Lr+r+1}")
    o += L(f"v_max_f32 v{mx}, v{mx}, v{Lr+9}\nv_min_f32 v{mn}, v{mn}, v{Lr+9}")
    o += L(f"v_mov_b32 v{t0}, v{mx}\nv_mov_b32 v{t1}, v{mn}")
    o += L(f"v_permlane32_swap_b32 v{mx}, v{t0}\nv_permlane32_swap_b32 v{mn}, v{t1}")
    o += L(f"v_max_f32 v{mx}, v{mx}, v{t0}\nv_min_f32 v{mn}, v{mn}, v{t1}")
    for r in range(10):
        o += L(f"v_sub_f32 v{ep[r]}, v{Lr+r}, v{mx}\nv_sub_f32 v{em[r]}, v{mn}, v{Lr+r}")
    for r in range(10):
        o += L(f"v_exp_f32 v{ep[r]}, v{ep[r]}\nv_exp_f32 v{em[r]}, v{em[r]}")
    sp, sm = mx, mn
    o += L(f"v_add_f32 v{sp}, v{ep[0]}, v{ep[1]}\nv_add_f32 v{sm}, v{em[0]}, v{em[1]}")
    for r in range(2, 10):
        o += L(f"v_add_f32 v{sp}, v{sp}, v{ep[r]}\nv_add_f32 v{sm}, v{sm}, v{em[r]}")
    o += L(f"v_mov_b32 v{t0}, v{sp}\nv_mov_b32 v{t1}, v{sm}")
    o += L(f"v_permlane32_swap_b32 v{sp}, v{t0}\nv_permlane32_swap_b32 v{sm}, v{t1}")
    o += L(f"v_add_f32 v{sp}, v{sp}, v{t0}\nv_add_f32 v{sm}, v{sm}, v{t1}")
    o += L(f"v_rcp_f32 v{sp}, v{sp}\nv_rcp_f32 v{sm}, v{sm}")
    for r in range(10):
        o += L(f"v_mul_f32 v{ep[r]}, v{ep[r]}, v{sp}\nv_mul_f32 v{em[r]}, v{em[r]}, v{sm}")
    vals = list(ep) + list(em)
    for k in range(10):
        o += L(f"v_cvt_pk_bf16_f32 v{P+k}, v{vals[2*k]}, v{vals[2*k+1]}")
    return o

class Stamps:
    def __init__(self, p, on, first=70):
        self.p, self.on, self.first, self.n = p, on, first, 0
    def stamp(self):
        if not self.on: return
        r = self.first + 4 * self.n
        self.p("s_waitcnt lgkmcnt(0)")
        self.p(f"s_memrealtime s[{r}:{r+1}]\ns_memtime s[{r+2}:{r+3}]\ns_waitcnt lgkmcnt(0)")
        self.n += 1
    def flush(self, ws_lo, kidx, wave_s):
        if not self.on: return
        p = self.p
        p(f"s_lshl_b32 s3, s2, 7\ns_add_u32 s3, s3, {PROF_OFF + kidx*256*128}")
        p(f"s_add_u32 s4, s{ws_lo}, s3\ns_addc_u32 s5, s{ws_lo+1}, 0\ns_mov_b32 s6, 128\ns_mov_b32 s7, 0x20000")
        p(f"s_cmp_lg_u32 s{wave_s}, 0\ns_cbranch_scc1 L_prof_skip{kidx}")
        p("v_mov_b32 v1, 0")
        for i in range(self.n):
            r = self.first + 4 * i
            p(f"v_mov_b32 v2, s{r}\nv_mov_b32 v3, s{r+2}")
            p(f"buffer_store_dwordx2 v[2:3], v1, s[4:7], 0 offen offset:{8*i}")
        p(f"L_prof_skip{kidx}:")

def gen_k2(name="k2_kernel", prof=False):
    p = Prog()
    st_ = Stamps(p, prof)
    tail = Prog()
    NSET, PF = 5, 4
    def setreg(st):
        return ("a", 80 + 36 * st) if st < 4 else ("v", 128)
    def wfr(st, ft):
        c, b = setreg(st); return f"{c}[{b+4*ft}:{b+4*ft+3}]"
    def afr(st, tb):
        c, b = setreg(st); return f"{c}[{b+20+4*tb}:{b+20+4*tb+3}]"
    sX, sOut, sH, sO, sW, sLOG, sKVP, sFL, sOall = 12, 16, 20, 24, 28, 32, 36, 40, 44
    s_x, s_r, s_i, s_j, s_w = 48, 49, 50, 51, 52
    s_t0, s_t1, s_t2 = 53, 54, 55
    s_aoff, s_woff = 56, 57
    p(f"{name}:")
    p("s_cmp_ge_u32 s2, 256\ns_cbranch_scc1 L_k2_end")
    p("s_load_dwordx2 s[4:5], s[0:1], 0\ns_load_dwordx2 s[6:7], s[0:1], 64\ns_load_dwordx2 s[8:9], s[0:1], 80")
    p("v_lshrrev_b32 v1, 6, v0")
    p(f"s_and_b32 s{s_x}, s2, 7\ns_lshr_b32 s{s_r}, s2, 3")
    p(f"v_readfirstlane_b32 s{s_w}, v1")
    p(f"s_lshr_b32 s{s_t0}, s{s_r}, 3\ns_lshl_b32 s{s_i}, s{s_x}, 2\ns_add_u32 s{s_i}, s{s_i}, s{s_t0}")
    p(f"s_and_b32 s{s_j}, s{s_r}, 7")
    p("v_and_b32 v1, 63, v0\nv_lshlrev_b32 v2, 4, v1\nv_add_u32 v3, 4096, v2")
    for tb in range(4):
        p(f"v_add_u32 v{4+tb}, {tb*NS_F*1024}, v2\nv_add_u32 v{8+tb}, {tb*NS_O*1024}, v2")
    p("s_waitcnt lgkmcnt(0)")
    st_.stamp()
    srd(p, sX, 4, 0, S * D * 2)
    srd(p, sOut, 6, 0, S * D * 2)
    p(f"s_mul_i32 s{s_t0}, s{s_i}, {4*NS_F*1024}\ns_add_u32 s{s_t0}, s{s_t0}, {H_OFF}")
    srd(p, sH, 8, f"s{s_t0}", 4 * NS_F * 1024)
    p(f"s_mul_i32 s{s_t0}, s{s_i}, {4*NS_O*1024}\ns_add_u32 s{s_t0}, s{s_t0}, {O_OFF}")
    srd(p, sO, 8, f"s{s_t0}", 4 * NS_O * 1024)
    p(f"s_mul_i32 s{s_t0}, s{s_j}, {NS_ALL*5120}\ns_add_u32 s{s_t0}, s{s_t0}, {W2P_OFF}")
    srd(p, sW, 8, f"s{s_t0}", NS_ALL * 5120)
    p(f"s_mul_i32 s{s_t0}, s{s_r}, {NB32*2560}\ns_add_u32 s{s_t0}, s{s_t0}, {LOG_OFF}")
    srd(p, sLOG, 8, f"s{s_t0}", NB32 * 2560)
    p(f"s_lshr_b32 s{s_t0}, s{s_r}, 2\ns_mul_i32 s{s_t0}, s{s_t0}, {16*4*4096}")
    p(f"s_and_b32 s{s_t1}, s{s_r}, 3\ns_lshl_b32 s{s_t1}, s{s_t1}, 12\ns_add_u32 s{s_t0}, s{s_t0}, s{s_t1}")
    p(f"s_add_u32 s{s_t0}, s{s_t0}, {KVP_OFF}")
    srd(p, sKVP, 8, f"s{s_t0}", 16 * 4 * 4096)
    srd(p, sFL, 8, FLAG_OFF, 4096)
    srd(p, sOall, 8, O_OFF, NTB16 * NS_O * 1024)
    p("v_lshlrev_b32 v30, 4, v0")
    KV = 36
    for q in range(NPART):
        p(f"s_mov_b32 s{s_t0}, {q*4*4096}")
        p(f"buffer_load_dwordx4 v[{KV+4*q}:{KV+4*q+3}], v30, s[{sKVP}:{sKVP+3}], s{s_t0} offen")
    LG = 84
    p("v_lshlrev_b32 v31, 3, v1")
    p(f"s_lshl_b32 s{s_t1}, s{s_x}, 3\ns_lshl_b32 s{s_t2}, s{s_w}, 1\ns_add_u32 s{s_t1}, s{s_t1}, s{s_t2}")
    p(f"s_mul_i32 s{s_t0}, s{s_t1}, 2560")
    for b in range(2):
        base = LG + 12 * b
        p(f"buffer_load_dwordx4 v[{base}:{base+3}], v2, s[{sLOG}:{sLOG+3}], s{s_t0} offen")
        p(f"buffer_load_dwordx4 v[{base+4}:{base+7}], v2, s[{sLOG}:{sLOG+3}], s{s_t0} offen offset:1024")
        p(f"buffer_load_dwordx2 v[{base+8}:{base+9}], v31, s[{sLOG}:{sLOG+3}], s{s_t0} offen offset:2048")
        if b == 0:
            p(f"s_add_u32 s{s_t0}, s{s_t0}, 2560")
    s_b32 = 58
    p(f"s_mov_b32 s{s_b32}, s{s_t1}")
    def step_loads(n):
        st = n % NSET
        o = []
        if n < 13:
            o += L(f"s_mov_b32 s{s_aoff}, {n*4096}\ns_mov_b32 s{s_woff}, {n*4*5120}")
            o += L(f"s_lshl_b32 s{s_t0}, s{s_w}, 10\ns_add_u32 s{s_aoff}, s{s_aoff}, s{s_t0}")
            o += L(f"s_mul_i32 s{s_t0}, s{s_w}, 5120\ns_add_u32 s{s_woff}, s{s_woff}, s{s_t0}")
            sA, vA = sH, 4
        elif n < 18:
            m = n - 13
            o += L(f"s_lshl_b32 s{s_aoff}, s{s_w}, 10\ns_add_u32 s{s_aoff}, s{s_aoff}, {m*4096}")
            o += L(f"s_mul_i32 s{s_woff}, s{s_w}, 5120\ns_add_u32 s{s_woff}, s{s_woff}, {(NS_F+4*m)*5120}")
            sA, vA = sO, 8
        else:
            o += L(f"s_lshl_b32 s{s_aoff}, s{s_w}, 10\ns_add_u32 s{s_aoff}, s{s_aoff}, {52*1024}")
            o += L(f"s_mul_i32 s{s_woff}, s{s_w}, 5120\ns_add_u32 s{s_woff}, s{s_woff}, {52*5120}")
            o += L(f"s_cmp_ge_u32 s{s_w}, 2\ns_cselect_b32 s{s_aoff}, {OOB}, s{s_aoff}\ns_cselect_b32 s{s_woff}, {OOB}, s{s_woff}")
            sA, vA = sH, 4
        sc = " sc1" if 13 <= n < 18 else ""
        for tb in range(4):
            o += L(f"buffer_load_dwordx4 {afr(st,tb)}, v{vA+tb}, s[{sA}:{sA+3}], s{s_aoff} offen{sc}")
        for ft in range(5):
            if ft < 4:
                o += L(f"buffer_load_dwordx4 {wfr(st,ft)}, v2, s[{sW}:{sW+3}], s{s_woff} offen offset:{ft*1024}")
            else:
                o += L(f"buffer_load_dwordx4 {wfr(st,ft)}, v3, s[{sW}:{sW+3}], s{s_woff} offen")
        return o
    for n in range(PF):
        p.extend(step_loads(n))
    st_.stamp()
    XR = 12
    for k in range(3):
        p(f"v_add_u32 v32, {256*k}, v0")
        p("v_mul_u32_u24 v33, 6554, v32\nv_lshrrev_b32 v33, 16, v33")
        p("v_mul_u32_u24 v34, 10, v33\nv_sub_u32 v34, v32, v34")
        p(f"v_mul_u32_u24 v35, 336, v33\nv_lshlrev_b32 v{27+k}, 5, v34\nv_add_u32 v{27+k}, v{27+k}, v35")
        p(f"v_mul_u32_u24 v35, 1280, v33\nv_lshlrev_b32 v{24+k}, 4, v34\nv_add_u32 v{24+k}, v{24+k}, v35")
        if k == 2:
            p(f"v_cmp_gt_u32 vcc, 640, v32\nv_mov_b32 v35, {OOB}\nv_cndmask_b32 v{24+k}, v35, v{24+k}, vcc")
    s_xo = 59
    p(f"s_mul_i32 s{s_xo}, s{s_i}, {64*1280}\ns_mul_i32 s{s_t0}, s{s_j}, 160\ns_add_u32 s{s_xo}, s{s_xo}, s{s_t0}")
    for k in range(3):
        p(f"buffer_load_dwordx4 v[{XR+4*k}:{XR+4*k+3}], v{24+k}, s[{sX}:{sX+3}], s{s_xo} offen")
    for r in range(80):
        p(f"v_accvgpr_write_b32 a{r}, 0")
    for q in range(1, NPART):
        for e in range(4):
            p(f"v_add_f32 v{KV+e}, v{KV+e}, v{KV+4*q+e}")
    p("v_mul_u32_u24 v32, 5462, v0\nv_lshrrev_b32 v32, 16, v32")
    p("v_mul_u32_u24 v33, 12, v32\nv_sub_u32 v33, v0, v33")
    p("v_mov_b32 v34, 0")
    p("v_cmp_eq_u32 vcc, 9, v33\nv_cmp_eq_u32 s[60:61], 11, v33\ns_or_b64 vcc, vcc, s[60:61]")
    p("v_cmp_le_u32 s[60:61], 21, v32\ns_or_b64 vcc, vcc, s[60:61]")
    for e in range(4):
        p(f"v_cndmask_b32 v{KV+e}, v{KV+e}, v34, vcc")
    p(f"v_cvt_pk_bf16_f32 v{KV}, v{KV}, v{KV+1}\nv_cvt_pk_bf16_f32 v{KV+1}, v{KV+2}, v{KV+3}")
    p("v_mul_u32_u24 v32, 96, v32\nv_lshlrev_b32 v33, 3, v33\nv_add_u32 v32, v32, v33")
    p(f"ds_write_b64 v32, v[{KV}:{KV+1}]", tok="kvt")
    p("v_mov_b32 v34, 0\nv_mov_b32 v35, 0")
    p(f"v_and_b32 v33, 7, v1\nv_lshlrev_b32 v33, 3, v33\nv_add_u32 v33, {21*96+32}, v33")
    p("ds_write_b64 v33, v[34:35]", tok="kvt")
    st_.stamp()
    p.need("kvt")
    p("s_barrier")
    st_.stamp()
    p("v_and_b32 v32, 31, v1\nv_lshrrev_b32 v33, 3, v32\nv_lshlrev_b32 v33, 2, v33\nv_and_b32 v34, 3, v32\nv_add_u32 v33, v33, v34")
    p("v_bfe_u32 v34, v32, 2, 1\nv_mul_u32_u24 v34, 10, v34\nv_add_u32 v34, v34, v33")
    p("v_cmp_eq_u32 vcc, 10, v33\nv_cndmask_b32 v34, v34, 20, vcc")
    p("v_cmp_lt_u32 vcc, 10, v33\nv_cndmask_b32 v34, v34, 21, vcc")
    p("v_mul_u32_u24 v34, 96, v34\nv_lshrrev_b32 v35, 5, v1\nv_lshlrev_b32 v35, 4, v35\nv_add_u32 v34, v34, v35")
    AF = 36
    for sg in range(3):
        p(f"ds_read_b128 v[{AF+4*sg}:{AF+4*sg+3}], v34 offset:{32*sg}")
    p("v_and_b32 v32, 15, v1\nv_lshlrev_b32 v32, 4, v32")
    p(f"v_bfe_u32 v33, v1, 4, 1\nv_mul_u32_u24 v33, {NS_O*1024}, v33\nv_add_u32 v32, v32, v33")
    p("v_lshrrev_b32 v33, 5, v1\nv_lshlrev_b32 v34, 8, v33\nv_add_u32 v48, v32, v34")
    p("v_lshlrev_b32 v34, 2, v33\nv_add_u32 v49, v32, v34")
    s_om, s_ox = 62, 63
    p(f"s_lshr_b32 s{s_t0}, s{s_r}, 1\ns_mul_i32 s{s_t0}, s{s_t0}, 5")
    p(f"s_and_b32 s{s_t1}, s{s_r}, 1")
    p(f"s_lshl_b32 s{s_t2}, s{s_t1}, 1\ns_add_u32 s{s_om}, s{s_t0}, s{s_t2}\ns_lshl_b32 s{s_om}, s{s_om}, 8")
    p(f"s_add_u32 s{s_ox}, s{s_t0}, 4\ns_lshl_b32 s{s_ox}, s{s_ox}, 8\ns_lshl_b32 s{s_t1}, s{s_t1}, 3\ns_add_u32 s{s_ox}, s{s_ox}, s{s_t1}")
    p(f"s_mul_i32 s{s_t0}, s{s_b32}, {2*NS_O*1024}\ns_add_u32 s{s_om}, s{s_om}, s{s_t0}\ns_add_u32 s{s_ox}, s{s_ox}, s{s_t0}")
    PH, TT, OA = 52, 176, 208
    p(f"v_mov_b32 v{PH+10}, 0\nv_mov_b32 v{PH+11}, 0")
    p(f"s_mov_b32 s{s_t2}, 0x358637bd")
    for b in range(2):
        p.extend(softmax_phi(LG + 12 * b, PH, TT))
        p(f"v_mfma_f32_32x32x16_bf16 v[{OA}:{OA+15}], v[{AF}:{AF+3}], v[{PH}:{PH+3}], 0")
        p(f"v_mfma_f32_32x32x16_bf16 v[{OA}:{OA+15}], v[{AF+4}:{AF+7}], v[{PH+4}:{PH+7}], v[{OA}:{OA+15}]")
        p(f"v_mfma_f32_32x32x16_bf16 v[{OA}:{OA+15}], v[{AF+8}:{AF+11}], v[{PH+8}:{PH+11}], v[{OA}:{OA+15}]")
        p(f"v_add_f32 v{TT}, s{s_t2}, v{OA+10}\nv_rcp_f32 v{TT}, v{TT}")
        for r in range(10):
            p(f"v_mul_f32 v{OA+r}, v{OA+r}, v{TT}")
        ob = 224 + 8 * b
        for k in range(5):
            p(f"v_cvt_pk_bf16_f32 v{ob+k}, v{OA+2*k}, v{OA+2*k+1}")
        p(f"buffer_store_dwordx4 v[{ob}:{ob+3}], v48, s[{sOall}:{sOall+3}], s{s_om} offen sc1", tok="ost")
        p(f"buffer_store_dword v{ob+4}, v49, s[{sOall}:{sOall+3}], s{s_ox} offen sc1", tok="ost")
        if b == 0:
            p(f"s_add_u32 s{s_om}, s{s_om}, {2*NS_O*1024}\ns_add_u32 s{s_ox}, s{s_ox}, {2*NS_O*1024}")
    s_fp = 64
    p(f"s_lshl_b32 s{s_fp}, s{s_x}, 2\ns_add_u32 s{s_fp}, s{s_fp}, s{s_w}\ns_lshl_b32 s{s_fp}, s{s_fp}, 5\ns_add_u32 s{s_fp}, s{s_fp}, s{s_r}\ns_lshl_b32 s{s_fp}, s{s_fp}, 2")
    s_fc = 65
    p(f"s_lshl_b32 s{s_fc}, s{s_i}, 7")
    p("v_and_b32 v32, 31, v1\nv_lshlrev_b32 v32, 2, v32\nv_mov_b32 v33, 1\nv_mov_b32 v34, 0")
    st_.stamp()
    for n in range(19):
        st = n % NSET
        mf = []
        for ft in range(5):
            for tb in range(4):
                acc = f"a[{(ft*4+tb)*4}:{(ft*4+tb)*4+3}]"
                mf.append(Ins(f"v_mfma_f32_16x16x32_bf16 {acc}, {wfr(st,ft)}, {afr(st,tb)}, {acc}"))
        nxt = step_loads(n + PF) if n + PF < 19 else []
        if n + PF == 13:
            p("v_cmp_ne_u32 vcc, 1, v35")
            p("s_cbranch_vccnz L_k2_spin")
            p("L_k2_go:")
        k = 0
        for i, m in enumerate(mf):
            p.add(m)
            if i >= 2:
                take = nxt[k:k + 1]
                for t in take:
                    p.add(t)
                k += len(take)
        for t in nxt[k:]:
            p.add(t)
        if n == 2:
            p.need("ost")
            p("v_cmp_eq_u32 vcc, 0, v1\ns_and_saveexec_b64 s[60:61], vcc")
            p(f"buffer_store_dword v33, v34, s[{sFL}:{sFL+3}], s{s_fp} offen sc1")
            p("s_mov_b64 exec, s[60:61]")
        if n + PF == 11:
            p(f"buffer_load_dword v35, v32, s[{sFL}:{sFL+3}], s{s_fc} offen sc1")
    st_.stamp()
    p("v_and_b32 v32, 15, v1\nv_mul_u32_u24 v32, 336, v32\nv_lshrrev_b32 v33, 4, v1\nv_lshlrev_b32 v33, 4, v33\nv_add_u32 v32, v32, v33")
    p(f"s_mul_i32 s{s_t0}, s{s_w}, 21504\nv_add_u32 v32, s{s_t0}, v32")
    p("s_barrier")
    for tb in range(4):
        for ft in range(5):
            a = (ft * 4 + tb) * 4
            p(f"ds_write_b128 v32, a[{a}:{a+3}] offset:{tb*16*336+ft*64}", tok="red")
    p.need("red")
    p("s_barrier")
    for k in range(3):
        R = 64 + 32 * k
        for w in range(4):
            p(f"v_add_u32 v{40+w}, {w*21504}, v{27+k}")
        for w in range(4):
            p(f"ds_read_b128 v[{R+8*w}:{R+8*w+3}], v{40+w}\nds_read_b128 v[{R+8*w+4}:{R+8*w+7}], v{40+w} offset:16")
    for k in range(3):
        R = 64 + 32 * k
        for e in range(8):
            p(f"v_add_f32 v{R+e}, v{R+e}, v{R+8+e}\nv_add_f32 v{R+16+e}, v{R+16+e}, v{R+24+e}")
        for e in range(8):
            p(f"v_add_f32 v{R+e}, v{R+e}, v{R+16+e}")
        for d in range(4):
            x = XR + 4 * k + d
            p(f"v_lshlrev_b32 v{R+8}, 16, v{x}\nv_and_b32 v{R+9}, 0xffff0000, v{x}")
            p(f"v_add_f32 v{R+2*d}, v{R+2*d}, v{R+8}\nv_add_f32 v{R+2*d+1}, v{R+2*d+1}, v{R+9}")
        for d in range(4):
            p(f"v_cvt_pk_bf16_f32 v{R+16+d}, v{R+2*d}, v{R+2*d+1}")
        p(f"buffer_store_dwordx4 v[{R+16}:{R+19}], v{24+k}, s[{sOut}:{sOut+3}], s{s_xo} offen")
    if prof:
        p("s_waitcnt vmcnt(0)")
    st_.stamp()
    st_.flush(8, 2, s_w)
    p("L_k2_end:\ns_endpgm")
    tail("L_k2_spin:")
    tail("s_mov_b32 s66, 0x40000")
    tail("L_k2_spin_loop:")
    tail("s_sleep 2")
    tail(f"buffer_load_dword v35, v32, s[{sFL}:{sFL+3}], s{s_fc} offen sc1")
    tail("s_waitcnt vmcnt(0)")
    tail("v_cmp_ne_u32 vcc, 1, v35")
    tail("s_cbranch_vccz L_k2_go")
    tail("s_sub_u32 s66, s66, 1\ns_cmp_lg_u32 s66, 0\ns_cbranch_scc1 L_k2_spin_loop")
    tail("s_branch L_k2_go")
    body = p.finish() + "\n" + tail.finish()
    info = dict(nops=p.nops_added, waits=p.waits_added, n=len(p.items))
    return body, info

KD = """.amdhsa_kernel {name}
  .amdhsa_next_free_vgpr {vgpr}
  .amdhsa_next_free_sgpr 102
  .amdhsa_accum_offset {acc}
  .amdhsa_group_segment_fixed_size 0
  .amdhsa_kernarg_size 88
  .amdhsa_user_sgpr_count 2
  .amdhsa_user_sgpr_kernarg_segment_ptr 1
  .amdhsa_system_sgpr_workgroup_id_x 1
  .amdhsa_float_denorm_mode_32 3
.end_amdhsa_kernel
"""

def wrap(kernels):
    out = []
    for (name, body, grid, block, lds, vgpr, acc) in kernels:
        out.append(f"; @launch kernel={name} grid=({grid},1,1) block=({block},1,1) lds={lds}")
    out.append('.amdgcn_target "amdgcn-amd-amdhsa--gfx950"')
    out.append(".text")
    seen = set()
    for (name, body, grid, block, lds, vgpr, acc) in kernels:
        if name in seen: continue
        seen.add(name)
        out.append(f".globl {name}\n.p2align 8\n.type {name},@function")
        out.append(body)
    out.append('.section .rodata,"a"')
    seen = set()
    for (name, body, grid, block, lds, vgpr, acc) in kernels:
        if name in seen: continue
        seen.add(name)
        out.append(".p2align 6")
        out.append(KD.format(name=name, vgpr=vgpr, acc=acc))
    return "\n".join(out) + "\n"

if __name__ == "__main__":
    body, info = gen_k2()
    print(info)
    open("k2.s", "w").write(wrap([("k2_kernel", body, 256, 256, 86016, 512, 256)]))
```

```python
S, D, H, DH, F = 2048, 640, 32, 20, 1728
NB32 = S // 32
NTB16 = S // 16
NS_F = F // 32
NS_O = D // 32
NS_ALL = NS_F + NS_O

def _al(x, a=4096):
    return (x + a - 1) // a * a

off = 0
STATS_OFF = off; off += _al(S * 8)
CS_OFF = off; off += _al((3 * D + 2 * F) * 4)
FLAG_OFF = off; off += _al(8 * 4 * 32 * 4)
H_OFF = off; off += _al(NTB16 * NS_F * 1024)
O_OFF = off; off += _al(NTB16 * NS_O * 1024)
W2P_OFF = off; off += _al(8 * NS_ALL * 5 * 1024)
LOG_OFF = off; off += _al(H * NB32 * 2560)
KVP_OFF = off; off += _al(8 * 16 * 4 * 4096)
APHI_OFF = off; off += _al(H * 2 * 1024)
CSP_OFF = off; off += _al(17 * 12 * 1280)
PROF_OFF = off; off += _al(3 * 256 * 128)
WS_USED = off
NPART = 13

def o_row(sp, gamma, e):
    q = 4 * sp + gamma
    a, u = divmod(q, 5)
    if u < 4:
        head, h, d = 2 * a + (u >> 1), u & 1, 10 * (u & 1) + e
    else:
        head, h = 2 * a + (e >> 2), (e >> 1) & 1
        d = 10 * h + 8 + (e & 1)
    return 20 * head + d

if __name__ == "__main__":
    print({k: v for k, v in globals().items() if k.endswith("_OFF") or k == "WS_USED"})
    assert sorted(o_row(s, g, e) for s in range(20) for g in range(4) for e in range(8)) == list(range(640))
```

```python
import k0gen, k1gen, k2gen
def build_text(prof=False):
    b0, i0 = k0gen.gen_k0(prof=prof)
    b1, i1 = k1gen.gen_k1(prof=prof)
    b2, i2 = k2gen.gen_k2(prof=prof)
    ks = [("k0_kernel", b0, 256, 256, 16384, 160, 160),
          ("k1_kernel", b1, 256, 256, 163840, 512, 256),
          ("k2_kernel", b2, 256, 256, 86016, 512, 256)]
    return k2gen.wrap(ks), ks, (i0, i1, i2)
if __name__ == "__main__":
    import sys
    txt, ks, info = build_text(False)
    hdr = open("parallel_sum__linear_kernel_hedgehog__glu_gated_reglu__prompt.s.ref").read().split("\n")
    keep = [l for l in hdr if l.startswith(";") and "@launch" not in l and "Override launch" not in l and "grid=ceil" not in l]
    keep = keep[:12]
    out = "\n".join(keep) + "\n" + txt
    path = sys.argv[1] if len(sys.argv) > 1 else "parallel_sum__linear_kernel_hedgehog__glu_gated_reglu__prompt.s"
    open(path, "w").write(out)
    print(info, len(out))
```

```python
import re

_REG1 = re.compile(r"^-?\|?(v|a|s)(\d+)\|?$")
_REGN = re.compile(r"^-?\|?(v|a|s)\[(\d+):(\d+)\]\|?$")
_ABS = re.compile(r"^-?abs\((.*)\)$")


def regs_of(tok):
    tok = tok.strip()
    m = _ABS.match(tok)
    if m:
        tok = m.group(1)
    m = _REG1.match(tok)
    if m:
        return [m.group(1) + m.group(2)]
    m = _REGN.match(tok)
    if m:
        return [m.group(1) + str(i) for i in range(int(m.group(2)), int(m.group(3)) + 1)]
    if tok == "vcc":
        return ["vcc"]
    if tok == "exec":
        return ["exec"]
    if tok == "m0":
        return ["m0"]
    return []


def split_ops(s):
    out, depth, cur = [], 0, ""
    for ch in s:
        if ch in "[(":
            depth += 1
        if ch in "])":
            depth -= 1
        if ch == "," and depth == 0:
            out.append(cur.strip())
            cur = ""
        else:
            cur += ch
    if cur.strip():
        out.append(cur.strip())
    return out


TRANS = ("v_exp_f32", "v_log_f32", "v_rcp_f32", "v_rsq_f32", "v_sqrt_f32", "v_sin_f32", "v_cos_f32")
SALU_NODST = ("s_cmp_", "s_waitcnt", "s_barrier", "s_nop", "s_branch", "s_cbranch", "s_setprio", "s_sleep",
              "s_endpgm", "s_bitcmp")
SALU_SCC_W = ("s_add_", "s_sub_", "s_addc_", "s_subb_", "s_and_", "s_or_", "s_xor_", "s_lshl_", "s_lshr_",
              "s_ashr_", "s_cmp_", "s_min_", "s_max_", "s_andn2", "s_bitcmp", "s_not_", "s_addk", "s_bfe_",
              "s_orn2")
SALU_SCC_R = ("s_cselect", "s_addc_", "s_subb_", "s_cbranch_scc")


class Ins:
    __slots__ = ("text", "mn", "kind", "wr", "rd", "passes", "tok", "srcC", "accrw", "cost", "wide", "mods", "note")

    def __init__(self, text, tok=None, cost=None):
        self.text = text.strip()
        self.tok = tok
        self.passes = 0
        self.srcC = []
        self.wide = False
        self.note = None
        t = self.text
        if t.endswith(":"):
            self.mn, self.kind, self.wr, self.rd, self.cost, self.mods = t, "label", [], [], 0, ""
            return
        parts = t.split(None, 1)
        mn = parts[0]
        self.mn = mn
        rest = parts[1] if len(parts) > 1 else ""
        ops = split_ops(rest)
        mods = ""
        if ops:
            last = ops[-1].split(None, 1)
            if len(last) > 1:
                ops[-1] = last[0]
                mods = last[1]
        self.mods = mods
        R = [regs_of(o) for o in ops]
        wr, rd = [], []
        if mn.startswith("v_mfma"):
            self.kind = "mfma"
            wr = R[0]
            rd = R[1] + R[2] + R[3]
            self.srcC = R[3]
            self.passes = 8 if "32x32x16" in mn else (4 if "16x16x32" in mn else (2 if "4x4x4" in mn else 8))
            c = 8
        elif mn.startswith("v_"):
            self.kind = "trans" if mn.startswith(TRANS) else "valu"
            c = 8 if self.kind == "trans" else 4
            if mn.startswith("v_cmp"):
                wr = R[0]
                rd = sum(R[1:], [])
            elif mn.startswith("v_permlane") and "swap" in mn:
                wr = R[0] + R[1]
                rd = R[0] + R[1]
            elif mn.startswith(("v_add_co", "v_sub_co", "v_addc_co", "v_subb_co")):
                wr = R[0] + R[1]
                rd = sum(R[2:], [])
            else:
                wr = R[0]
                rd = sum(R[1:], [])
                if mn.startswith(("v_fmac", "v_dot2c", "v_mac", "v_writelane")) or "_dpp" in mn or "d16" in mn:
                    rd = rd + R[0]
                if mn.startswith("v_cndmask") and len(ops) == 3:
                    rd = rd + ["vcc"]
            if not mn.startswith(("v_readlane", "v_readfirstlane", "v_writelane")):
                rd = rd + ["exec"]
        elif mn.startswith("ds_"):
            self.kind = "ds"
            if mn.startswith("ds_read") or mn.startswith(("ds_bpermute", "ds_swizzle")):
                wr = R[0]
                rd = sum(R[1:], [])
                if "d16" in mn:
                    rd = rd + R[0]
                c = 12 if "b128" in mn else 8
            else:
                rd = sum(R, [])
                c = 22 if "b128" in mn else (12 if "b64" in mn else 8)
        elif mn.startswith(("buffer_", "global_")):
            self.kind = "vmem"
            c = 8
            is_lds = re.search(r"\blds\b", mods) is not None
            if "load" in mn and not is_lds:
                wr = R[0]
                rd = sum(R[1:], [])
                if "d16" in mn:
                    rd = rd + R[0]
            elif "atomic" in mn and "sc0" in mods:
                wr = R[0]
                rd = sum(R, [])
            else:
                rd = sum(R, [])
                if is_lds:
                    rd = rd + ["m0"]
                if "store" in mn and ("x4" in mn or "x3" in mn):
                    self.wide = True
        elif mn.startswith("s_load") or mn.startswith(("s_memtime", "s_memrealtime")):
            self.kind = "smem"
            wr = R[0]
            rd = sum(R[1:], [])
            c = 4
        elif mn.startswith("s_"):
            c = 4
            if mn == "s_waitcnt":
                self.kind = "wait"
            elif mn == "s_barrier":
                self.kind = "barrier"
            elif mn == "s_nop":
                self.kind = "nop"
            elif mn.startswith(("s_branch", "s_cbranch", "s_endpgm")):
                self.kind = "branch"
            else:
                self.kind = "salu"
            if mn.startswith(SALU_NODST):
                rd = sum(R, [])
            else:
                wr = R[0]
                rd = sum(R[1:], [])
                if mn.startswith(("s_addk", "s_mulk")):
                    rd = rd + R[0]
            if "saveexec" in mn:
                wr = wr + ["exec", "scc"]
                rd = rd + ["exec"]
            if mn.startswith(SALU_SCC_W):
                wr = wr + ["scc"]
            if mn.startswith(SALU_SCC_R):
                rd = rd + ["scc"]
            if mn.startswith("s_cbranch_vcc"):
                rd = rd + ["vcc"]
            if mn.startswith("s_cbranch_exec"):
                rd = rd + ["exec"]
        else:
            raise ValueError("unknown instruction: " + t)
        self.wr, self.rd = wr, rd
        self.cost = c if cost is None else cost


class Need:
    def __init__(self, tok):
        self.tok = tok
        self.kind = "need"
        self.cost = 0


class Raw:
    def __init__(self, what):
        self.what = what
        self.kind = "raw"
        self.cost = 0


def is_v(r):
    return r[0] in "va" and r[1:].isdigit()


def is_s(r):
    return (r[0] == "s" and r[1:].isdigit()) or r == "vcc"


class Prog:
    def __init__(self):
        self.items = []
        self.nops_added = 0
        self.waits_added = 0

    def __call__(self, text, tok=None, cost=None):
        for line in text.split("\n"):
            line = line.strip()
            if line:
                self.items.append(Ins(line, tok=tok, cost=cost))
        return self

    def add(self, it):
        self.items.append(it)

    def extend(self, its):
        self.items.extend(its)

    def need(self, tok):
        self.items.append(Need(tok))

    def drain(self):
        self.items.append(Ins("s_waitcnt vmcnt(0) lgkmcnt(0)"))

    def settle(self):
        self.items.append(Raw("settle"))

    def resolve_waits(self):
        out = []
        vm_age, lg_age = {}, {}
        smem_pending = set()
        seen_tok = set()

        def bump(d):
            for k in d:
                d[k] += 1

        def apply_wait(vm, lg):
            if vm is not None:
                for k in [k for k, a in vm_age.items() if a >= vm]:
                    del vm_age[k]
            if lg is not None:
                for k in [k for k, a in lg_age.items() if a >= lg]:
                    del lg_age[k]
                if lg == 0:
                    smem_pending.clear()

        def emit_wait(vm, lg):
            parts = []
            if vm is not None:
                vm = min(vm, 63)
                parts.append("vmcnt(%d)" % vm)
            if lg is not None:
                lg = min(lg, 15)
                parts.append("lgkmcnt(%d)" % lg)
            if out and isinstance(out[-1], Ins) and out[-1].kind == "wait" and out[-1].note == "auto":
                pv = re.search(r"vmcnt\((\d+)\)", out[-1].text)
                pl = re.search(r"lgkmcnt\((\d+)\)", out[-1].text)
                if vm is None and pv:
                    vm = int(pv.group(1))
                elif vm is not None and pv:
                    vm = min(vm, int(pv.group(1)))
                if lg is None and pl:
                    lg = int(pl.group(1))
                elif lg is not None and pl:
                    lg = min(lg, int(pl.group(1)))
                out.pop()
                self.waits_added -= 1
                parts = []
                if vm is not None:
                    parts.append("vmcnt(%d)" % vm)
                if lg is not None:
                    parts.append("lgkmcnt(%d)" % lg)
            w = Ins("s_waitcnt " + " ".join(parts))
            w.note = "auto"
            out.append(w)
            self.waits_added += 1
            apply_wait(vm, lg)

        for it in self.items:
            if it.kind == "need":
                k = "tok:" + it.tok
                if it.tok not in seen_tok:
                    raise ValueError("need() before any operation with token " + it.tok)
                vm, lg = vm_age.get(k), lg_age.get(k)
                if vm is not None or lg is not None:
                    emit_wait(vm, lg)
                continue
            if it.kind in ("raw", "label"):
                out.append(it)
                continue
            if it.kind == "wait":
                mv = re.search(r"vmcnt\((\d+)\)", it.text)
                ml = re.search(r"lgkmcnt\((\d+)\)", it.text)
                apply_wait(int(mv.group(1)) if mv else None, int(ml.group(1)) if ml else None)
                out.append(it)
                continue
            touched = set(it.rd) | set(it.wr)
            vm = [vm_age[r] for r in touched if r in vm_age]
            lg = [lg_age[r] for r in touched if r in lg_age]
            sm = any(r in smem_pending for r in touched)
            if vm or lg or sm:
                emit_wait(min(vm) if vm else None, 0 if sm else (min(lg) if lg else None))
            out.append(it)
            if it.tok:
                seen_tok.add(it.tok)
            if it.kind == "vmem":
                bump(vm_age)
                for r in it.wr:
                    vm_age[r] = 0
                if it.tok:
                    vm_age["tok:" + it.tok] = 0
            elif it.kind == "ds":
                bump(lg_age)
                for r in it.wr:
                    lg_age[r] = 0
                if it.tok:
                    lg_age["tok:" + it.tok] = 0
            elif it.kind == "smem":
                for r in it.wr:
                    smem_pending.add(r)
                for k in lg_age:
                    lg_age[k] = 0 if False else lg_age[k]
                if lg_age:
                    raise ValueError("scalar load while LDS ops are outstanding: " + it.text)
        self.items = out

    @staticmethod
    def _need_states(p, c):
        n = 0
        pw, cr, cw = set(p.wr), set(c.rd), set(c.wr)
        vw = {r for r in pw if is_v(r)}
        if p.kind in ("valu", "trans"):
            if c.kind == "mfma" and vw & cr:
                n = max(n, 2)
            if c.kind == "mfma" and "exec" in pw:
                n = max(n, 4)
            if c.mn.startswith("v_permlane") and vw & cr:
                n = max(n, 2)
            if c.mn.startswith(("v_readlane", "v_readfirstlane")) and vw & cr:
                n = max(n, 1)
            if ("_dpp" in c.mn or "row_" in c.mods or "quad_perm" in c.mods) and vw & cr:
                n = max(n, 2)
            sw = {r for r in pw if is_s(r)}
            if sw:
                if c.kind == "vmem" and sw & cr:
                    n = max(n, 5)
                if c.kind in ("valu", "trans") and sw & cr:
                    n = max(n, 4 if c.mn.startswith(("v_readlane", "v_writelane")) else 2)
                if c.kind in ("salu", "branch") and sw & cr:
                    n = max(n, 4)
            if p.kind == "trans" and c.kind in ("valu", "mfma", "vmem", "ds") and vw & cr:
                n = max(n, 1)
        if p.kind == "mfma":
            P = p.passes
            d = set(p.wr)
            if c.kind == "mfma":
                cC = set(c.srcC)
                ab = set(c.rd) - cC
                if d & ab:
                    n = max(n, {2: 5, 4: 8, 8: 12}[P])
                if d & cC:
                    if cC == d and c.passes == P:
                        n = max(n, 2 if P == 2 else 0)
                    else:
                        n = max(n, {2: 4, 4: 6, 8: 10}[P])
                if d & cw and not (cC == d):
                    n = max(n, {2: 5, 4: 8, 8: 12}[P])
            elif c.kind in ("valu", "trans", "vmem", "ds"):
                if d & (cr | cw):
                    n = max(n, {2: 5, 4: 8, 8: 12}[P])
                if c.kind in ("valu", "trans") and set(p.srcC) & cw:
                    n = max(n, {2: 1, 4: 3, 8: 7}[P])
        if p.kind == "salu" and "m0" in pw and c.kind == "vmem" and "m0" in cr:
            n = max(n, 1)
        if p.kind == "salu" and "exec" in pw and c.kind == "mfma":
            n = max(n, 1)
        if p.kind == "vmem" and p.wide:
            data = set(p.rd)
            if c.kind in ("valu", "trans") and {r for r in cw if is_v(r)} & data:
                n = max(n, 2)
            elif c.kind in ("ds", "vmem", "mfma") and {r for r in cw if is_v(r)} & data:
                n = max(n, 1)
        return n

    def resolve_hazards(self):
        out = []
        hist = []

        def advance(k):
            for h in hist:
                h[1] += k
            while hist and hist[0][1] > 24:
                hist.pop(0)

        for it in self.items:
            if it.kind == "raw":
                if it.what == "settle":
                    worst = 0
                    for p, el in hist:
                        need = 0
                        if p.kind == "mfma":
                            need = {2: 5, 4: 8, 8: 12}[p.passes]
                        elif p.kind in ("valu", "trans"):
                            need = 5 if any(is_s(r) for r in p.wr) else 2
                        elif p.kind in ("salu", "vmem"):
                            need = 2
                        worst = max(worst, need - el)
                    while worst > 0:
                        k = min(worst, 16)
                        out.append(Ins("s_nop %d" % (k - 1)))
                        self.nops_added += 1
                        advance(k)
                        worst -= k
                continue
            if it.kind == "label":
                out.append(it)
                continue
            short = 0
            for p, el in hist:
                need = self._need_states(p, it)
                short = max(short, need - el)
            while short > 0:
                k = min(short, 16)
                out.append(Ins("s_nop %d" % (k - 1)))
                self.nops_added += 1
                advance(k)
                short -= k
            out.append(it)
            if it.kind == "nop":
                advance(int(it.text.split()[1]) + 1)
            else:
                advance(1)
            hist.append([it, 0])
        self.items = out

    def finish(self):
        self.resolve_waits()
        self.resolve_hazards()
        return "\n".join(("" if i.kind == "label" else "  ") + i.text for i in self.items)


def interleave(backbone, fillers, gap=32, slack=0):
    out = []
    credit = slack
    fi = 0
    for grp in backbone:
        fixed = 0
        g = gap
        for it in grp:
            out.append(it)
            fixed += it.cost
            if it.kind == "mfma":
                g = it.passes * 4
        credit += g - fixed
        while fi < len(fillers):
            c = fillers[fi].cost
            if c > credit + 2:
                break
            f = fillers[fi]
            out.append(f)
            credit -= c
            fi += 1
        credit = min(credit, 24)
    return out, fillers[fi:]


def L(text, tok=None, cost=None):
    return [Ins(l, tok=tok, cost=cost) for l in text.split("\n") if l.strip()]


class Gap:
    def __init__(self, n):
        self.n = n
        self.kind = "gap"
        self.cost = 0


class Bundle:
    def __init__(self, items):
        self.items = list(items)
        self.kind = "bundle"
        self.cost = sum(i.cost for i in self.items)


class Mark:
    def __init__(self, name):
        self.name = name
        self.kind = "mark"
        self.cost = 0


class Sched:
    def __init__(self, prog):
        self.p = prog
        self.q = []
        self.credit = 0
        self.window = []
        self.hold = 0
        self.slack = 1
        self.fq = []
        self.n = 0
        self.tq = []

    def push(self, items):
        self.q.extend(items)

    def _emit(self, it):
        if it.kind == "bundle":
            for x in it.items:
                self._emit(x)
            return
        self.p.add(it)
        if isinstance(it, Ins):
            self.window.append(it)
            if len(self.window) > 16:
                self.window.pop(0)

    def _clear(self, it):
        if it.kind == "bundle":
            return self._clear(it.items[0])
        if not isinstance(it, Ins):
            return True
        n = len(self.window)
        for i, prev in enumerate(self.window):
            if Prog._need_states(prev, it) > n - 1 - i:
                return False
        return True

    def group(self, grp, fill=True):
        fixed, span = 0, 0
        for it in grp:
            self._emit(it)
            fixed += it.cost
            if it.kind == "mfma":
                span += it.passes * 4
        for ent in self.fq:
            units, left = ent
            k = -(-len(units) // max(left, 1))
            for u in units[:k]:
                for it in u:
                    self._emit(it)
                    fixed += it.cost
            ent[0] = units[k:]
            ent[1] = left - 1
            if k:
                break
        self.fq = [e for e in self.fq if e[0]]
        while self.tq and self.tq[0][0] <= self.n:
            for it in self.tq.pop(0)[1]:
                self._emit(it)
                fixed += it.cost
        self.n += 1
        self.credit = min(self.credit, 0) + max(span, fixed) - fixed
        if self.hold > 0:
            self.hold -= 1
        while fill and self.q and self.hold == 0:
            f = self.q[0]
            if f.kind == "gap":
                self.q.pop(0)
                self.hold = f.n
                continue
            if f.kind == "mark":
                self.q.pop(0)
                continue
            if not self._clear(f):
                break
            if f.kind == "mfma":
                self.q.pop(0)
                self._emit(f)
                self.credit = f.passes * 4 - f.cost
                continue
            if f.cost > self.credit + self.slack and not (f.kind == "bundle" and self.credit >= 12):
                break
            self.q.pop(0)
            self._emit(f)
            self.credit -= f.cost

    def force(self, units, groups):
        self.fq.append([list(units), groups])

    def at(self, units, groups, start=0):
        last = self.tq[-1][0] if self.tq else -1
        lo = max(self.n + start, last)
        span = max(self.n + start + groups - lo, 1)
        for i, u in enumerate(units):
            self.tq.append((lo + (i * span) // len(units), u))

    def flush_forced(self):
        for _, u in self.tq:
            for it in u:
                self._emit(it)
        self.tq = []
        for units, _ in self.fq:
            for u in units:
                for it in u:
                    self._emit(it)
        self.fq = []

    def flush(self, upto=None):
        if upto is not None and not any(f.kind == "mark" and f.name == upto for f in self.q):
            return
        while self.q:
            f = self.q.pop(0)
            if f.kind == "mark":
                if f.name == upto:
                    break
                continue
            if f.kind == "gap":
                continue
            self._emit(f)
        self.credit = 0
        self.hold = 0
```

```python
from asmb import Prog, L, Ins, Need
from layout import *

OOB = 0x40000000

def srd(p, base_s, ptr_lo, off_expr_s, size):
    p(f"s_add_u32 s{base_s}, s{ptr_lo}, {off_expr_s}")
    p(f"s_addc_u32 s{base_s+1}, s{ptr_lo+1}, 0")
    p(f"s_mov_b32 s{base_s+2}, {size}")
    p(f"s_mov_b32 s{base_s+3}, 0x20000")

def softmax_phi(Lr, P, T, ep=None, em=None):
    o = []
    mx, mn, t0, t1 = T, T + 1, T + 2, T + 3
    ep = ep or [T + 4 + r for r in range(10)]
    em = em or [T + 14 + r for r in range(10)]
    o += L(f"v_max3_f32 v{mx}, v{Lr}, v{Lr+1}, v{Lr+2}\nv_min3_f32 v{mn}, v{Lr}, v{Lr+1}, v{Lr+2}")
    for r in (3, 5, 7):
        o += L(f"v_max3_f32 v{mx}, v{mx}, v{Lr+r}, v{Lr+r+1}\nv_min3_f32 v{mn}, v{mn}, v{Lr+r}, v{Lr+r+1}")
    o += L(f"v_max_f32 v{mx}, v{mx}, v{Lr+9}\nv_min_f32 v{mn}, v{mn}, v{Lr+9}")
    o += L(f"v_mov_b32 v{t0}, v{mx}\nv_mov_b32 v{t1}, v{mn}")
    o += L(f"v_permlane32_swap_b32 v{mx}, v{t0}\nv_permlane32_swap_b32 v{mn}, v{t1}")
    o += L(f"v_max_f32 v{mx}, v{mx}, v{t0}\nv_min_f32 v{mn}, v{mn}, v{t1}")
    for r in range(10):
        o += L(f"v_sub_f32 v{ep[r]}, v{Lr+r}, v{mx}\nv_sub_f32 v{em[r]}, v{mn}, v{Lr+r}")
    for r in range(10):
        o += L(f"v_exp_f32 v{ep[r]}, v{ep[r]}\nv_exp_f32 v{em[r]}, v{em[r]}")
    sp, sm = mx, mn
    o += L(f"v_add_f32 v{sp}, v{ep[0]}, v{ep[1]}\nv_add_f32 v{sm}, v{em[0]}, v{em[1]}")
    for r in range(2, 10):
        o += L(f"v_add_f32 v{sp}, v{sp}, v{ep[r]}\nv_add_f32 v{sm}, v{sm}, v{em[r]}")
    o += L(f"v_mov_b32 v{t0}, v{sp}\nv_mov_b32 v{t1}, v{sm}")
    o += L(f"v_permlane32_swap_b32 v{sp}, v{t0}\nv_permlane32_swap_b32 v{sm}, v{t1}")
    o += L(f"v_add_f32 v{sp}, v{sp}, v{t0}\nv_add_f32 v{sm}, v{sm}, v{t1}")
    o += L(f"v_rcp_f32 v{sp}, v{sp}\nv_rcp_f32 v{sm}, v{sm}")
    for r in range(10):
        o += L(f"v_mul_f32 v{ep[r]}, v{ep[r]}, v{sp}\nv_mul_f32 v{em[r]}, v{em[r]}, v{sm}")
    vals = list(ep) + list(em)
    for k in range(10):
        o += L(f"v_cvt_pk_bf16_f32 v{P+k}, v{vals[2*k]}, v{vals[2*k+1]}")
    return o

class Stamps:
    TMP = 98
    def __init__(self, p, on, first=66):
        self.p, self.on, self.first, self.n = p, on, first, 0
    def stamp(self):
        if not self.on: return
        t = self.TMP
        self.p("s_waitcnt lgkmcnt(0)")
        self.p(f"s_memtime s[{t}:{t+1}]\ns_memrealtime s[{t+2}:{t+3}]\ns_waitcnt lgkmcnt(0)")
        self.p(f"s_mov_b32 s{self.first+2+self.n}, s{t}")
        if self.n == 0:
            self.p(f"s_mov_b32 s{self.first}, s{t+2}")
        self.p(f"s_mov_b32 s{self.first+1}, s{t+2}")
        self.n += 1
        assert self.first + 2 + self.n <= t
    def flush(self, ws_lo, kidx, wave_s):
        if not self.on: return
        p = self.p
        p(f"s_lshl_b32 s3, s2, 7\ns_add_u32 s3, s3, {PROF_OFF + kidx*256*128}")
        p(f"s_add_u32 s4, s{ws_lo}, s3\ns_addc_u32 s5, s{ws_lo+1}, 0\ns_mov_b32 s6, 128\ns_mov_b32 s7, 0x20000")
        p(f"s_cmp_lg_u32 s{wave_s}, 0\ns_cbranch_scc1 L_prof_skip{kidx}")
        p("v_mov_b32 v1, 0")
        for i in range(min(30, self.TMP - self.first)):
            p(f"v_mov_b32 v2, s{self.first+i}")
            p(f"buffer_store_dword v2, v1, s[4:7], 0 offen offset:{4*i}")
        p(f"L_prof_skip{kidx}:")

def mix(p, compute, loads, every):
    li = 0
    for i, it in enumerate(compute):
        p.add(it)
        if (i + 1) % every == 0 and li < len(loads):
            for x in loads[li]:
                p.add(x)
            li += 1
    for grp in loads[li:]:
        for x in grp:
            p.add(x)


def load_groups(ins):
    out, cur = [], []
    for it in ins:
        cur.append(it)
        if it.kind == "vmem":
            out.append(cur); cur = []
    if cur:
        out[-1].extend(cur)
    return out


def gen_k2(name="k2_kernel", prof=False):
    p = Prog()
    st_ = Stamps(p, prof)
    tail = Prog()
    NSET, PF = 5, 4
    def setreg(st):
        return ("a", 80 + 36 * st) if st < 4 else ("v", 128)
    def wfr(st, ft):
        c, b = setreg(st); return f"{c}[{b+4*ft}:{b+4*ft+3}]"
    def afr(st, tb):
        c, b = setreg(st); return f"{c}[{b+20+4*tb}:{b+20+4*tb+3}]"
    sX, sOut, sH, sO, sW, sLOG, sKVP, sFL, sOall = 12, 16, 20, 24, 28, 32, 36, 40, 44
    s_x, s_r, s_i, s_j, s_w = 48, 49, 50, 51, 52
    s_t0, s_t1, s_t2 = 53, 54, 55
    s_aoff, s_woff = 56, 57
    s_b32, s_xo, s_head, s_tg = 58, 59, 10, 11
    p(f"{name}:")
    p("s_cmp_ge_u32 s2, 256\ns_cbranch_scc1 L_k2_end")
    p("s_load_dwordx2 s[4:5], s[0:1], 0\ns_load_dwordx2 s[6:7], s[0:1], 64\ns_load_dwordx2 s[8:9], s[0:1], 80")
    p("v_lshrrev_b32 v1, 6, v0")
    p(f"s_and_b32 s{s_x}, s2, 7\ns_lshr_b32 s{s_r}, s2, 3")
    p(f"v_readfirstlane_b32 s{s_w}, v1")
    p(f"s_lshr_b32 s{s_t0}, s{s_r}, 3\ns_lshl_b32 s{s_i}, s{s_x}, 2\ns_add_u32 s{s_i}, s{s_i}, s{s_t0}")
    p(f"s_and_b32 s{s_j}, s{s_r}, 7")
    p(f"s_lshl_b32 s{s_head}, s{s_x}, 2\ns_and_b32 s{s_t0}, s{s_r}, 3\ns_add_u32 s{s_head}, s{s_head}, s{s_t0}\ns_lshr_b32 s{s_tg}, s{s_r}, 2")
    p("v_and_b32 v1, 63, v0\nv_lshlrev_b32 v2, 4, v1\nv_lshlrev_b32 v30, 4, v0\nv_lshlrev_b32 v31, 3, v1")
    p("s_waitcnt lgkmcnt(0)")
    st_.stamp()
    p(f"s_lshr_b32 s{s_t0}, s{s_head}, 2\ns_mul_i32 s{s_t0}, s{s_t0}, {16*4*4096}")
    p(f"s_and_b32 s{s_t1}, s{s_head}, 3\ns_lshl_b32 s{s_t1}, s{s_t1}, 12\ns_add_u32 s{s_t0}, s{s_t0}, s{s_t1}")
    p(f"s_add_u32 s{s_t0}, s{s_t0}, {KVP_OFF}")
    srd(p, sKVP, 8, f"s{s_t0}", 16 * 4 * 4096)
    KV = 36
    for q in range(NPART):
        p(f"s_mov_b32 s{s_t0}, {q*4*4096}")
        p(f"buffer_load_dwordx4 v[{KV+4*q}:{KV+4*q+3}], v30, s[{sKVP}:{sKVP+3}], s{s_t0} offen")
    p(f"s_mul_i32 s{s_t0}, s{s_head}, {NB32*2560}\ns_add_u32 s{s_t0}, s{s_t0}, {LOG_OFF}")
    srd(p, sLOG, 8, f"s{s_t0}", NB32 * 2560)
    LG = 96
    p(f"s_lshl_b32 s{s_b32}, s{s_tg}, 3\ns_lshl_b32 s{s_t2}, s{s_w}, 1\ns_add_u32 s{s_b32}, s{s_b32}, s{s_t2}")
    p(f"s_mul_i32 s{s_t0}, s{s_b32}, 2560")
    for b in range(2):
        base = LG + 12 * b
        p(f"buffer_load_dwordx4 v[{base}:{base+3}], v2, s[{sLOG}:{sLOG+3}], s{s_t0} offen")
        p(f"buffer_load_dwordx4 v[{base+4}:{base+7}], v2, s[{sLOG}:{sLOG+3}], s{s_t0} offen offset:1024")
        p(f"buffer_load_dwordx2 v[{base+8}:{base+9}], v31, s[{sLOG}:{sLOG+3}], s{s_t0} offen offset:2048")
        if b == 0:
            p(f"s_add_u32 s{s_t0}, s{s_t0}, 2560")
    p("v_add_u32 v3, 4096, v2")
    for tb in range(4):
        p(f"v_add_u32 v{4+tb}, {tb*NS_F*1024}, v2\nv_add_u32 v{8+tb}, {tb*NS_O*1024}, v2")
    srd(p, sX, 4, 0, S * D * 2)
    srd(p, sOut, 6, 0, S * D * 2)
    p(f"s_mul_i32 s{s_t0}, s{s_i}, {4*NS_F*1024}\ns_add_u32 s{s_t0}, s{s_t0}, {H_OFF}")
    srd(p, sH, 8, f"s{s_t0}", 4 * NS_F * 1024)
    p(f"s_mul_i32 s{s_t0}, s{s_i}, {4*NS_O*1024}\ns_add_u32 s{s_t0}, s{s_t0}, {O_OFF}")
    srd(p, sO, 8, f"s{s_t0}", 4 * NS_O * 1024)
    p(f"s_mul_i32 s{s_t0}, s{s_j}, {NS_ALL*5120}\ns_add_u32 s{s_t0}, s{s_t0}, {W2P_OFF}")
    srd(p, sW, 8, f"s{s_t0}", NS_ALL * 5120)
    srd(p, sFL, 8, FLAG_OFF, 4096)
    srd(p, sOall, 8, O_OFF, NTB16 * NS_O * 1024)
    def step_loads(n):
        st = n % NSET
        o = []
        if n < 13:
            o += L(f"s_lshl_b32 s{s_aoff}, s{s_w}, 10\ns_add_u32 s{s_aoff}, s{s_aoff}, {n*4096}")
            o += L(f"s_mul_i32 s{s_woff}, s{s_w}, 5120\ns_add_u32 s{s_woff}, s{s_woff}, {n*4*5120}")
            sA, vA = sH, 4
        elif n < 18:
            m = n - 13
            o += L(f"s_lshl_b32 s{s_aoff}, s{s_w}, 10\ns_add_u32 s{s_aoff}, s{s_aoff}, {m*4096}")
            o += L(f"s_mul_i32 s{s_woff}, s{s_w}, 5120\ns_add_u32 s{s_woff}, s{s_woff}, {(NS_F+4*m)*5120}")
            sA, vA = sO, 8
        else:
            o += L(f"s_lshl_b32 s{s_aoff}, s{s_w}, 10\ns_add_u32 s{s_aoff}, s{s_aoff}, {52*1024}")
            o += L(f"s_mul_i32 s{s_woff}, s{s_w}, 5120\ns_add_u32 s{s_woff}, s{s_woff}, {52*5120}")
            o += L(f"s_cmp_ge_u32 s{s_w}, 2\ns_cselect_b32 s{s_aoff}, {OOB}, s{s_aoff}\ns_cselect_b32 s{s_woff}, {OOB}, s{s_woff}")
            sA, vA = sH, 4
        sc = " sc1" if 13 <= n < 18 else ""
        for ft in range(5):
            if ft < 4:
                o += L(f"buffer_load_dwordx4 {wfr(st,ft)}, v2, s[{sW}:{sW+3}], s{s_woff} offen offset:{ft*1024}")
            else:
                o += L(f"buffer_load_dwordx4 {wfr(st,ft)}, v3, s[{sW}:{sW+3}], s{s_woff} offen")
            if ft < 4:
                o += L(f"buffer_load_dwordx4 {afr(st,ft)}, v{vA+ft}, s[{sA}:{sA+3}], s{s_aoff} offen{sc}")
        return o
    pre = []
    for n in range(PF):
        pre += load_groups(step_loads(n))
    XR = 12
    c0 = []
    for k in range(3):
        c0 += L(f"v_add_u32 v32, {256*k}, v0")
        c0 += L("v_mul_u32_u24 v33, 6554, v32\nv_lshrrev_b32 v33, 16, v33")
        c0 += L("v_mul_u32_u24 v34, 10, v33\nv_sub_u32 v34, v32, v34")
        c0 += L(f"v_mul_u32_u24 v35, 336, v33\nv_lshlrev_b32 v{27+k}, 5, v34\nv_add_u32 v{27+k}, v{27+k}, v35")
        c0 += L(f"v_mul_u32_u24 v35, 1280, v33\nv_lshlrev_b32 v{24+k}, 4, v34\nv_add_u32 v{24+k}, v{24+k}, v35")
        if k == 2:
            c0 += L(f"v_cmp_gt_u32 vcc, 640, v32\nv_mov_b32 v35, {OOB}\nv_cndmask_b32 v{24+k}, v35, v{24+k}, vcc")
    c0 += L(f"s_mul_i32 s{s_xo}, s{s_i}, {64*1280}\ns_mul_i32 s{s_t0}, s{s_j}, 160\ns_add_u32 s{s_xo}, s{s_xo}, s{s_t0}")
    for r in range(80):
        c0 += L(f"v_accvgpr_write_b32 a{r}, 0")
    mix(p, c0, pre[:6], 18); pre = pre[6:]
    c1 = []
    for q in range(1, NPART):
        for e in range(4):
            c1 += L(f"v_add_f32 v{KV+e}, v{KV+e}, v{KV+4*q+e}")
    c1 += L("v_mul_u32_u24 v32, 5462, v0\nv_lshrrev_b32 v32, 16, v32")
    c1 += L("v_mul_u32_u24 v33, 12, v32\nv_sub_u32 v33, v0, v33")
    c1 += L("v_mov_b32 v34, 0")
    c1 += L("v_cmp_eq_u32 vcc, 9, v33\nv_cmp_eq_u32 s[60:61], 11, v33\ns_or_b64 vcc, vcc, s[60:61]")
    c1 += L("v_cmp_le_u32 s[60:61], 21, v32\ns_or_b64 vcc, vcc, s[60:61]")
    for e in range(4):
        c1 += L(f"v_cndmask_b32 v{KV+e}, v{KV+e}, v34, vcc")
    c1 += L(f"v_cvt_pk_bf16_f32 v{KV}, v{KV}, v{KV+1}\nv_cvt_pk_bf16_f32 v{KV+1}, v{KV+2}, v{KV+3}")
    c1 += L("v_mul_u32_u24 v32, 96, v32\nv_lshlrev_b32 v33, 3, v33\nv_add_u32 v32, v32, v33")
    c1 += L(f"ds_write_b64 v32, v[{KV}:{KV+1}]", tok="kvt")
    c1 += L("v_mov_b32 v35, 0")
    c1 += L(f"v_and_b32 v33, 7, v1\nv_lshlrev_b32 v33, 3, v33\nv_add_u32 v33, {21*96+32}, v33")
    c1 += L("ds_write_b64 v33, v[34:35]", tok="kvt")
    mix(p, c1, pre[:4], 16); pre = pre[4:]
    st_.stamp()
    p.need("kvt")
    p("s_barrier")
    c2 = []
    c2 += L("v_and_b32 v32, 31, v1\nv_lshrrev_b32 v33, 3, v32\nv_lshlrev_b32 v33, 2, v33\nv_and_b32 v34, 3, v32\nv_add_u32 v33, v33, v34")
    c2 += L("v_bfe_u32 v34, v32, 2, 1\nv_mul_u32_u24 v34, 10, v34\nv_add_u32 v34, v34, v33")
    c2 += L("v_cmp_eq_u32 vcc, 10, v33\nv_cndmask_b32 v34, v34, 20, vcc")
    c2 += L("v_cmp_lt_u32 vcc, 10, v33\nv_cndmask_b32 v34, v34, 21, vcc")
    c2 += L("v_mul_u32_u24 v34, 96, v34\nv_lshrrev_b32 v35, 5, v1\nv_lshlrev_b32 v35, 4, v35\nv_add_u32 v34, v34, v35")
    AF = 36
    for sg in range(3):
        c2 += L(f"ds_read_b128 v[{AF+4*sg}:{AF+4*sg+3}], v34 offset:{32*sg}")
    c2 += L("v_and_b32 v32, 15, v1\nv_lshlrev_b32 v32, 4, v32")
    c2 += L(f"v_bfe_u32 v33, v1, 4, 1\nv_mul_u32_u24 v33, {NS_O*1024}, v33\nv_add_u32 v32, v32, v33")
    c2 += L("v_lshrrev_b32 v33, 5, v1\nv_lshlrev_b32 v34, 8, v33\nv_add_u32 v48, v32, v34")
    c2 += L("v_lshlrev_b32 v34, 2, v33\nv_add_u32 v49, v32, v34")
    s_om, s_ox = 62, 63
    c2 += L(f"s_lshr_b32 s{s_t0}, s{s_head}, 1\ns_mul_i32 s{s_t0}, s{s_t0}, 5")
    c2 += L(f"s_and_b32 s{s_t1}, s{s_head}, 1")
    c2 += L(f"s_lshl_b32 s{s_t2}, s{s_t1}, 1\ns_add_u32 s{s_om}, s{s_t0}, s{s_t2}\ns_lshl_b32 s{s_om}, s{s_om}, 8")
    c2 += L(f"s_add_u32 s{s_ox}, s{s_t0}, 4\ns_lshl_b32 s{s_ox}, s{s_ox}, 8\ns_lshl_b32 s{s_t1}, s{s_t1}, 3\ns_add_u32 s{s_ox}, s{s_ox}, s{s_t1}")
    c2 += L(f"s_mul_i32 s{s_t0}, s{s_b32}, {2*NS_O*1024}\ns_add_u32 s{s_om}, s{s_om}, s{s_t0}\ns_add_u32 s{s_ox}, s{s_ox}, s{s_t0}")
    PH, TT, OA = 52, 176, 208
    c2 += L(f"v_mov_b32 v{PH+10}, 0\nv_mov_b32 v{PH+11}, 0")
    c2 += L(f"s_mov_b32 s{s_t2}, 0x358637bd")
    for b in range(2):
        c2 += softmax_phi(LG + 12 * b, PH, TT)
        c2 += L(f"v_mfma_f32_32x32x16_bf16 v[{OA}:{OA+15}], v[{AF}:{AF+3}], v[{PH}:{PH+3}], 0")
        c2 += L(f"v_mfma_f32_32x32x16_bf16 v[{OA}:{OA+15}], v[{AF+4}:{AF+7}], v[{PH+4}:{PH+7}], v[{OA}:{OA+15}]")
        c2 += L(f"v_mfma_f32_32x32x16_bf16 v[{OA}:{OA+15}], v[{AF+8}:{AF+11}], v[{PH+8}:{PH+11}], v[{OA}:{OA+15}]")
        c2 += L(f"v_add_f32 v{TT}, s{s_t2}, v{OA+10}\nv_rcp_f32 v{TT}, v{TT}")
        for r in range(10):
            c2 += L(f"v_mul_f32 v{OA+r}, v{OA+r}, v{TT}")
        ob = 224 + 8 * b
        for k in range(5):
            c2 += L(f"v_cvt_pk_bf16_f32 v{ob+k}, v{OA+2*k}, v{OA+2*k+1}")
        c2 += L(f"buffer_store_dwordx4 v[{ob}:{ob+3}], v48, s[{sOall}:{sOall+3}], s{s_om} offen sc1", tok="ost")
        c2 += L(f"buffer_store_dword v{ob+4}, v49, s[{sOall}:{sOall+3}], s{s_ox} offen sc1", tok="ost")
        if b == 0:
            c2 += L(f"s_add_u32 s{s_om}, s{s_om}, {2*NS_O*1024}\ns_add_u32 s{s_ox}, s{s_ox}, {2*NS_O*1024}")
    resid = [[Ins(f"buffer_load_dwordx4 v[{XR+4*k}:{XR+4*k+3}], v{24+k}, s[{sX}:{sX+3}], s{s_xo} offen")] for k in range(3)]
    mix(p, c2, pre + resid, 13)
    s_fp = 64
    p(f"s_lshl_b32 s{s_fp}, s{s_tg}, 2\ns_add_u32 s{s_fp}, s{s_fp}, s{s_w}\ns_lshl_b32 s{s_fp}, s{s_fp}, 5\ns_add_u32 s{s_fp}, s{s_fp}, s{s_head}\ns_lshl_b32 s{s_fp}, s{s_fp}, 2")
    s_fc = 65
    p(f"s_lshl_b32 s{s_fc}, s{s_i}, 7")
    p("v_and_b32 v32, 31, v1\nv_lshlrev_b32 v32, 2, v32\nv_mov_b32 v33, 1\nv_mov_b32 v34, 0")
    st_.stamp()
    for n in range(19):
        st = n % NSET
        mf = []
        for ft in range(5):
            for tb in range(4):
                acc = f"a[{(ft*4+tb)*4}:{(ft*4+tb)*4+3}]"
                mf.append(Ins(f"v_mfma_f32_16x16x32_bf16 {acc}, {wfr(st,ft)}, {afr(st,tb)}, {acc}"))
        nxt = load_groups(step_loads(n + PF)) if n + PF < 19 else []
        if n + PF == 13:
            p("v_cmp_ne_u32 vcc, 1, v35")
            p("s_cbranch_vccnz L_k2_spin")
            p("L_k2_go:")
        mix(p, mf, nxt, 2)
        if n == 2:
            p.need("ost")
            p("v_cmp_eq_u32 vcc, 0, v1\ns_and_saveexec_b64 s[60:61], vcc")
            p(f"buffer_store_dword v33, v34, s[{sFL}:{sFL+3}], s{s_fp} offen sc1")
            p("s_mov_b64 exec, s[60:61]")
        if n + PF == 11:
            p(f"buffer_load_dword v35, v32, s[{sFL}:{sFL+3}], s{s_fc} offen sc1")
    st_.stamp()
    p("v_and_b32 v32, 15, v1\nv_mul_u32_u24 v32, 336, v32\nv_lshrrev_b32 v33, 4, v1\nv_lshlrev_b32 v33, 4, v33\nv_add_u32 v32, v32, v33")
    p(f"s_mul_i32 s{s_t0}, s{s_w}, 21504\nv_add_u32 v32, s{s_t0}, v32")
    p("s_barrier")
    for tb in range(4):
        for ft in range(5):
            a = (ft * 4 + tb) * 4
            p(f"ds_write_b128 v32, a[{a}:{a+3}] offset:{tb*16*336+ft*64}", tok="red")
    p.need("red")
    p("s_barrier")
    st_.stamp()
    for k in range(3):
        R = 64 + 32 * k
        for w in range(4):
            p(f"v_add_u32 v{40+w}, {w*21504}, v{27+k}")
        for w in range(4):
            p(f"ds_read_b128 v[{R+8*w}:{R+8*w+3}], v{40+w}\nds_read_b128 v[{R+8*w+4}:{R+8*w+7}], v{40+w} offset:16")
    for k in range(3):
        R = 64 + 32 * k
        for e in range(8):
            p(f"v_add_f32 v{R+e}, v{R+e}, v{R+8+e}\nv_add_f32 v{R+16+e}, v{R+16+e}, v{R+24+e}")
        for e in range(8):
            p(f"v_add_f32 v{R+e}, v{R+e}, v{R+16+e}")
        for d in range(4):
            x = XR + 4 * k + d
            p(f"v_lshlrev_b32 v{R+8}, 16, v{x}\nv_and_b32 v{R+9}, 0xffff0000, v{x}")
            p(f"v_add_f32 v{R+2*d}, v{R+2*d}, v{R+8}\nv_add_f32 v{R+2*d+1}, v{R+2*d+1}, v{R+9}")
        for d in range(4):
            p(f"v_cvt_pk_bf16_f32 v{R+16+d}, v{R+2*d}, v{R+2*d+1}")
        p(f"buffer_store_dwordx4 v[{R+16}:{R+19}], v{24+k}, s[{sOut}:{sOut+3}], s{s_xo} offen")
    st_.stamp()
    if prof:
        p("s_waitcnt vmcnt(0)")
    st_.stamp()
    st_.flush(8, 2, s_w)
    p("L_k2_end:\ns_endpgm")
    tail("L_k2_spin:")
    tail("s_mov_b32 s3, 0x40000")
    tail("L_k2_spin_loop:")
    tail("s_sleep 2")
    tail(f"buffer_load_dword v35, v32, s[{sFL}:{sFL+3}], s{s_fc} offen sc1")
    tail("s_waitcnt vmcnt(0)")
    tail("v_cmp_ne_u32 vcc, 1, v35")
    tail("s_cbranch_vccz L_k2_go")
    tail("s_sub_u32 s3, s3, 1\ns_cmp_lg_u32 s3, 0\ns_cbranch_scc1 L_k2_spin_loop")
    tail("s_branch L_k2_go")
    body = p.finish() + "\n" + tail.finish()
    info = dict(nops=p.nops_added, waits=p.waits_added, n=len(p.items))
    return body, info

KD = """.amdhsa_kernel {name}
  .amdhsa_next_free_vgpr {vgpr}
  .amdhsa_next_free_sgpr 102
  .amdhsa_accum_offset {acc}
  .amdhsa_group_segment_fixed_size 0
  .amdhsa_kernarg_size 88
  .amdhsa_user_sgpr_count 2
  .amdhsa_user_sgpr_kernarg_segment_ptr 1
  .amdhsa_system_sgpr_workgroup_id_x 1
  .amdhsa_float_denorm_mode_32 3
.end_amdhsa_kernel
"""

def wrap(kernels):
    out = []
    for (name, body, grid, block, lds, vgpr, acc) in kernels:
        out.append(f"; @launch kernel={name} grid=({grid},1,1) block=({block},1,1) lds={lds}")
    out.append('.amdgcn_target "amdgcn-amd-amdhsa--gfx950"')
    out.append(".text")
    seen = set()
    for (name, body, grid, block, lds, vgpr, acc) in kernels:
        if name in seen: continue
        seen.add(name)
        out.append(f".globl {name}\n.p2align 8\n.type {name},@function")
        out.append(body)
    out.append('.section .rodata,"a"')
    seen = set()
    for (name, body, grid, block, lds, vgpr, acc) in kernels:
        if name in seen: continue
        seen.add(name)
        out.append(".p2align 6")
        out.append(KD.format(name=name, vgpr=vgpr, acc=acc))
    return "\n".join(out) + "\n"

if __name__ == "__main__":
    body, info = gen_k2()
    print(info)
    open("k2.s", "w").write(wrap([("k2_kernel", body, 256, 256, 86016, 512, 256)]))
```

```python
from asmb import Prog, L, Ins, Need, Gap, Mark, Bundle, Sched
from layout import *
from k2gen import srd, OOB, Stamps, softmax_phi

N_FFN = 144
NPG_ATT = 14

sX, sW, sST, sCSP, sO1, sDBG, sPK, sW2, sPHI, sKV = 24, 28, 32, 36, 40, 44, 48, 52, 56, 60
s_w, s_cb, s_pg, s_b0, s_j0 = 64, 65, 66, 67, 68
s_jw, s_wlim, s_jx, s_xlim = 69, 70, 71, 72
s_mw, s_mx = 73, 74
s_so, s_t0, s_t1, s_t2, s_t3 = 75, 76, 77, 78, 79
s_st, s_out, s_pst, s_pcol = 80, 81, 82, 83
s_e = 3
PROF_FIRST = 84


def rng(c, b, n):
    return f"{c}[{b}:{b+n-1}]"


def flat(units):
    return [it for u in units for it in u]


class Var:
    def __init__(self, kind):
        self.kind = kind
        ffn = kind == "ffn"
        self.NT, self.NB = (3, 4) if ffn else (2, 5)
        self.NWD = 3 if ffn else 2
        self.stride = 3456 if ffn else 3840
        self.WREG = 12288 if ffn else 8192
        self.XST = self.NB * 4096
        self.WR0 = 3 * self.XST
        self.STG = self.WR0 + 8 * self.WREG
        assert self.STG + 16384 <= 163840
        self.ACC = 256 - 16 * self.NT * self.NB
        v = 2
        def alloc(n, align=1):
            nonlocal v
            v = (v + align - 1) // align * align
            b = v
            v += n
            return b
        self.vXD = alloc(1)
        self.vWD = alloc(self.NWD)
        self.vXA = alloc(4)
        self.nWT = 2 if ffn else 1
        self.vWT = alloc(self.NT * self.nWT)
        self.vOut = alloc(2)
        self.vSTo = alloc(1)
        self.vPK = alloc(2)
        if not ffn:
            self.vPW, self.vVW, self.vVW2, self.vPA, self.vVA = [alloc(1) for _ in range(5)]
            self.APH = alloc(8, 4)
        self.T = alloc(0, 4)
        self.nT = self.ACC - self.T
        self.ST = self.T + (24 if ffn else 32)
        self.WF, self.XF = 0, 24
        self.ONES, self.CSA = 64, 68
        self.KV, self.BX = 80, 104

    def acc(self, b, tau):
        return self.ACC + 16 * (self.NT * b + tau)

    def wf(self, s, tau):
        return self.WF + 4 * (self.NT * (s & 1) + tau)

    def xf(self, s, b):
        return self.XF + 4 * (self.NB * (s & 1) + b)


def advance(reg, step, lim, wrap):
    return [Bundle(L(f"s_add_u32 s{reg}, s{reg}, {step}\ns_cmp_ge_u32 s{reg}, s{lim}\n"
                     f"s_cselect_b32 s{s_t3}, {wrap}, 0\ns_sub_u32 s{reg}, s{reg}, s{s_t3}"))]


def dma_w(V, s):
    u0 = []
    if s and (s & 3) == 0:
        u0 += advance(s_jw, 64 * V.stride, s_wlim, 640 * V.stride)[0].items
    u0 += L(f"s_add_u32 m0, s{s_mw}, {V.WR0 + (s & 7) * V.WREG}\ns_add_u32 s{s_so}, s{s_jw}, {(s & 3) * 16 * V.stride}")
    units = []
    for n in range(V.NWD):
        ins = Ins(f"buffer_load_dwordx4 v{V.vWD+n}, s[{sW}:{sW+3}], s{s_so} offen offset:{1024*n} lds", tok=f"w{s}")
        units.append((u0 if n == 0 else []) + [ins])
    return units


def dma_x(V, t, b):
    u = []
    if t and b == 0:
        u += advance(s_jx, 128, s_xlim, 1280)[0].items
    u += L(f"s_add_u32 m0, s{s_mx}, {(t % 3) * V.XST + b * 4096}\ns_add_u32 s{s_so}, s{s_jx}, {b * 40960}")
    u += [Ins(f"buffer_load_dwordx4 v{V.vXD}, s[{sX}:{sX+3}], s{s_so} offen lds", tok=f"x{t}")]
    return [u]


def w_reads(V, s):
    o = []
    reg = s & 7
    rowstep = 1536 if V.kind == "ffn" else 2048
    for tau in range(V.NT):
        b = V.wf(s, tau)
        if V.kind == "ffn":
            a, off = V.vWT + 2 * tau + (1 if reg >= 5 else 0), (reg - 5 if reg >= 5 else reg) * V.WREG
        else:
            a, off = V.vWT + tau, reg * V.WREG
        o.append([Ins(f"ds_read_b64_tr_b16 a[{b+2*x}:{b+2*x+1}], v{a} offset:{off + x*rowstep}") for x in range(2)])
    return o


def x_reads(V, s):
    t, u = s >> 2, s & 3
    return [Ins(f"ds_read_b128 {rng('a', V.xf(s, b), 4)}, v{V.vXA+u} offset:{(t % 3) * V.XST + b * 4096}") for b in range(V.NB)]


def reads(V, s):
    x, w = x_reads(V, s), w_reads(V, s)
    return [x[0]] + w[0] + x[1:] + flat(w[1:])


def allreduce16(v):
    return flat([L(f"v_add_f32_dpp v{v}, v{v}, v{v} row_ror:{sh} row_mask:0xf bank_mask:0xf") for sh in (8, 4, 2, 1)])


def swap_add(v, t, kind):
    return L(f"v_mov_b32 v{t}, v{v}\nv_permlane{kind}_swap_b32 v{v}, v{t}\nv_add_f32 v{v}, v{v}, v{t}")


def stats_issue(p, V):
    T = V.T
    p(f"s_lshl_b32 s{s_t0}, s2, 3\ns_lshl_b32 s{s_t1}, s{s_w}, 1\ns_add_u32 s{s_t0}, s{s_t0}, s{s_t1}")
    p(f"v_lshrrev_b32 v{T+36}, 5, v1\nv_add_u32 v{T+36}, s{s_t0}, v{T+36}\nv_and_b32 v{T+12}, 31, v1")
    p(f"v_mul_u32_u24 v{T+13}, 1280, v{T+36}\nv_lshl_add_u32 v{T+13}, v{T+12}, 4, v{T+13}")
    p(f"v_add_u32 v{T+14}, 1024, v{T+13}\nv_cmp_gt_u32 vcc, 16, v{T+12}\nv_mov_b32 v{T+15}, {OOB}")
    p(f"v_cndmask_b32 v{T+14}, v{T+15}, v{T+14}, vcc\nv_cndmask_b32 v{T+37}, 0, 1.0, vcc")
    p(f"buffer_load_dwordx4 v[{T}:{T+3}], v{T+13}, s[{sX}:{sX+3}], 0 offen")
    p(f"buffer_load_dwordx4 v[{T+4}:{T+7}], v{T+13}, s[{sX}:{sX+3}], 0 offen offset:512")
    p(f"buffer_load_dwordx4 v[{T+8}:{T+11}], v{T+14}, s[{sX}:{sX+3}], 0 offen")


def stats_finish(V):
    T = V.T
    E, a, b = T + 12, T + 38, T + 39
    tokv, mask = T + 36, T + 37
    o = []
    for d in range(12):
        o += L(f"v_lshlrev_b32 v{E+2*d}, 16, v{T+d}\nv_and_b32 v{E+2*d+1}, 0xffff0000, v{T+d}")
    o += L(f"v_add_f32 v{a}, v{E}, v{E+1}\nv_add_f32 v{b}, v{E+2}, v{E+3}")
    for i in range(4, 24, 2):
        o += L(f"v_add_f32 v{a}, v{a}, v{E+i}\nv_add_f32 v{b}, v{b}, v{E+i+1}")
    o += L(f"v_add_f32 v{a}, v{a}, v{b}")
    o += allreduce16(a) + swap_add(a, b, 16)
    o += L(f"v_mul_f32 v{a}, 0x3acccccd, v{a}")
    for i in range(24):
        o += L(f"v_sub_f32 v{E+i}, v{E+i}, v{a}")
    o += L(f"v_mul_f32 v{b}, v{E}, v{E}\nv_mul_f32 v{T}, v{E+16}, v{E+16}\nv_mul_f32 v{T+1}, v{E+1}, v{E+1}")
    for i in range(2, 16):
        r = b if i % 2 == 0 else T + 1
        o += L(f"v_fmac_f32 v{r}, v{E+i}, v{E+i}")
        if i < 9:
            o += L(f"v_fmac_f32 v{T}, v{E+15+i}, v{E+15+i}")
    o += L(f"v_add_f32 v{b}, v{b}, v{T+1}\nv_fmac_f32 v{b}, v{T}, v{mask}")
    o += allreduce16(b) + swap_add(b, T, 16)
    o += L(f"v_mov_b32 v{T}, 0x3727c5ac\nv_fmac_f32 v{T}, 0x3acccccd, v{b}\nv_rsq_f32 v{b}, v{T}")
    o += L(f"v_lshlrev_b32 v{T}, 3, v{tokv}\nv_and_b32 v{T+1}, 31, v1\nv_cmp_eq_u32 vcc, 0, v{T+1}\nv_mov_b32 v{T+1}, {OOB}\nv_cndmask_b32 v{T}, v{T+1}, v{T}, vcc")
    o += [Ins(f"buffer_store_dwordx2 v[{a}:{b}], v{T}, s[{sST}:{sST+3}], 0 offen sc1", tok="p0")]
    return o


def pack_issue(p, V):
    t = V.T + 16
    st, col = s_pst, s_pcol
    p(f"s_lshl_b32 s{s_t0}, s{s_w}, 8\ns_add_u32 s{s_t0}, s{s_t0}, s2")
    p(f"s_mul_hi_u32 s{st}, s{s_t0}, 0x1999999a\ns_mul_i32 s{col}, s{st}, 10\ns_sub_u32 s{col}, s{s_t0}, s{col}")
    p(f"s_cmp_ge_u32 s{st}, {NS_F}\ns_cselect_b32 s{sPK}, s10, s16\ns_cselect_b32 s{sPK+1}, s11, s17\ns_mov_b32 s{sPK+2}, {F*D*2}\ns_cselect_b32 s{sPK+2}, {D*D*2}, s{sPK+2}\ns_mov_b32 s{sPK+3}, 0x20000")
    p(f"s_cmp_ge_u32 s{s_t0}, 740\ns_cselect_b32 s{sPK+2}, 0, s{sPK+2}")
    p(f"v_lshrrev_b32 v{t}, 3, v1\nv_and_b32 v{t+1}, 7, v1\nv_lshlrev_b32 v{t+1}, 4, v{t+1}\ns_lshl_b32 s{s_t1}, s{col}, 7\nv_add_u32 v{t+1}, s{s_t1}, v{t+1}")
    p(f"v_lshrrev_b32 v{t+2}, 2, v{t}\nv_mul_u32_u24 v{t+2}, 20, v{t+2}\nv_bfe_u32 v{t+3}, v{t}, 1, 1\nv_mul_u32_u24 v{t+3}, 10, v{t+3}\nv_add_u32 v{t+2}, v{t+2}, v{t+3}\nv_and_b32 v{t+3}, 1, v{t}\nv_add3_u32 v{t+2}, v{t+2}, v{t+3}, 8")
    for i in range(4):
        p(f"s_sub_u32 s{s_t0}, s{st}, {NS_F}\ns_lshl_b32 s{s_t0}, s{s_t0}, 2\ns_add_u32 s{s_t0}, s{s_t0}, {i}")
        p(f"s_mul_hi_u32 s{s_t1}, s{s_t0}, 0x33333334\ns_mul_i32 s{s_t2}, s{s_t1}, 5\ns_sub_u32 s{s_t2}, s{s_t0}, s{s_t2}")
        p(f"s_mul_i32 s{s_t1}, s{s_t1}, 40\ns_lshr_b32 s{s_t0}, s{s_t2}, 1\ns_mul_i32 s{s_t0}, s{s_t0}, 20\ns_add_u32 s{s_t0}, s{s_t0}, s{s_t1}")
        p(f"s_and_b32 s{s_t3}, s{s_t2}, 1\ns_mul_i32 s{s_t3}, s{s_t3}, 10\ns_add_u32 s{s_t0}, s{s_t0}, s{s_t3}")
        p(f"s_cmp_eq_u32 s{s_t2}, 4\ns_cselect_b32 s{s_t0}, s{s_t1}, s{s_t0}\ns_cselect_b64 vcc, -1, 0")
        p(f"v_cndmask_b32 v{t+4}, v{t}, v{t+2}, vcc")
        p(f"s_lshl_b32 s{s_t1}, s{st}, 5\ns_add_u32 s{s_t1}, s{s_t1}, {8*i}")
        p(f"s_cmp_ge_u32 s{st}, {NS_F}\ns_cselect_b32 s{s_t0}, s{s_t0}, s{s_t1}\ns_cselect_b64 vcc, -1, 0")
        p(f"v_cndmask_b32 v{t+4}, v{t}, v{t+4}, vcc\nv_add_u32 v{t+4}, s{s_t0}, v{t+4}")
        p(f"v_mul_u32_u24 v{t+4}, 1280, v{t+4}\nv_add_u32 v{t+4}, v{t+4}, v{t+1}")
        p(f"s_lshl_b32 s{s_t0}, s{s_w}, 12\ns_add_u32 m0, s{s_t0}, {V.STG + 1024*i}")
        p(f"buffer_load_dwordx4 v{t+4}, s[{sPK}:{sPK+3}], 0 offen lds", tok="pk")
    a = V.vPK
    p(f"v_lshrrev_b32 v{a}, 4, v1\nv_lshlrev_b32 v{a}, 3, v{a}\nv_bfe_u32 v{t}, v1, 2, 2\nv_add_u32 v{a}, v{a}, v{t}\nv_lshlrev_b32 v{a}, 7, v{a}")
    p(f"v_and_b32 v{t}, 3, v1\nv_lshl_add_u32 v{a}, v{t}, 3, v{a}\ns_lshl_b32 s{s_t0}, s{s_w}, 12\ns_add_u32 s{s_t0}, s{s_t0}, {V.STG}\nv_add_u32 v{a}, s{s_t0}, v{a}")
    p(f"v_lshlrev_b32 v{a+1}, 4, v1")


def pack_finish(V):
    F0 = V.T
    st, col = s_pst, s_pcol
    o = [Need("pk")]
    for ft in range(4):
        o += L(f"ds_read_b64_tr_b16 v[{F0+4*ft}:{F0+4*ft+1}], v{V.vPK} offset:{32*ft}\nds_read_b64_tr_b16 v[{F0+4*ft+2}:{F0+4*ft+3}], v{V.vPK} offset:{32*ft+512}")
    o += [Gap(3)]
    for ft in range(4):
        a, b = s_t0, s_t1
        o += L(f"s_lshl_b32 s{a}, s{col}, 2\ns_add_u32 s{a}, s{a}, {ft}\ns_mul_hi_u32 s{b}, s{a}, 0x33333334\ns_mul_i32 s{s_t2}, s{b}, 5\ns_sub_u32 s{a}, s{a}, s{s_t2}")
        o += L(f"s_mul_i32 s{b}, s{b}, {NS_ALL}\ns_add_u32 s{b}, s{b}, s{st}\ns_mul_i32 s{b}, s{b}, 5120\ns_lshl_b32 s{a}, s{a}, 10\ns_add_u32 s{s_st}, s{b}, s{a}")
        o += [Bundle(L(f"s_cmp_ge_u32 s{st}, {NS_ALL}\ns_cselect_b32 s{s_st}, {OOB}, s{s_st}"))]
        o += [Ins(f"buffer_store_dwordx4 v[{F0+4*ft}:{F0+4*ft+3}], v{V.vPK+1}, s[{sW2}:{sW2+3}], s{s_st} offen sc1", tok="p0")]
    return o


def cs_store(V):
    t = V.T
    o = L(f"v_lshlrev_b32 v{t}, 2, v1\nv_cmp_gt_u32 vcc, 32, v1\nv_mov_b32 v{t+1}, {OOB}\nv_cndmask_b32 v{t}, v{t+1}, v{t}, vcc")
    o += L(f"s_lshl_b32 s{s_st}, s{s_j0}, 7")
    for tau in range(V.NT):
        o += [Ins(f"buffer_store_dword a{V.CSA+4*tau}, v{t}, s[{sCSP}:{sCSP+3}], s{s_st} offen offset:{1280*tau} sc1", tok="p0")]
    return o


def flag_store(V):
    t = V.T
    o = L(f"v_cmp_eq_u32 vcc, 0, v1\nv_mov_b32 v{t}, {OOB}\nv_mov_b32 v{t+1}, s2\nv_cndmask_b32 v{t}, v{t}, v{t+1}, vcc\nv_mov_b32 v{t+1}, 1")
    o += [Bundle(L(f"s_cmp_eq_u32 s{s_w}, 0\ns_cselect_b32 s{s_st}, 0, {OOB}"))]
    o += [Ins(f"buffer_store_byte v{t+1}, v{t}, s[{sDBG}:{sDBG+3}], s{s_st} offen sc1")]
    return o


def zero_oflags(V):
    t = V.T
    o = L(f"v_mov_b32 v{t}, 0\nv_mov_b32 v{t+1}, 0\nv_mov_b32 v{t+2}, 0\nv_mov_b32 v{t+3}, 0\nv_lshlrev_b32 v{t+4}, 4, v0")
    o += [Bundle(L(f"s_cmp_eq_u32 s2, 255\ns_cselect_b32 s{s_st}, {FLAG_OFF - STATS_OFF}, {OOB}"))]
    o += [Ins(f"buffer_store_dwordx4 v[{t}:{t+3}], v{t+4}, s[{sKV}:{sKV+3}], s{s_st} offen sc1", tok="p0")]
    return o


def phi_issue(p, V):
    t = V.T + 52
    p(f"v_and_b32 v{t}, 31, v1\nv_lshrrev_b32 v{t+1}, 3, v{t}\nv_lshlrev_b32 v{t+1}, 2, v{t+1}\nv_and_b32 v{t+2}, 3, v{t}\nv_add_u32 v{t+1}, v{t+1}, v{t+2}")
    p(f"v_bfe_u32 v{t+2}, v{t}, 2, 1\nv_mul_u32_u24 v{t+2}, 10, v{t+2}\nv_add_u32 v{t+2}, v{t+2}, v{t+1}\nv_lshlrev_b32 v{t+2}, 1, v{t+2}")
    p(f"v_cmp_gt_u32 vcc, 10, v{t+1}\nv_mov_b32 v{t+3}, {OOB}\nv_cndmask_b32 v{t+2}, v{t+3}, v{t+2}, vcc")
    p(f"v_lshrrev_b32 v{t}, 5, v1\nv_mul_u32_u24 v{t+1}, 160, v{t}\nv_add_u32 v{t+1}, v{t+1}, v{t+2}")
    p(f"v_cmp_eq_u32 vcc, 0, v{t}\nv_cndmask_b32 v{t+2}, v{t+3}, v{t+2}, vcc")
    R = V.T + 40
    for e in range(8):
        d = e if e < 4 else e + 4
        p(f"buffer_load_ushort v{R+e}, v{t+1}, s[{sPHI}:{sPHI+3}], 0 offen offset:{d*40}")
    for e in range(4):
        p(f"buffer_load_ushort v{R+8+e}, v{t+2}, s[{sPHI}:{sPHI+3}], 0 offen offset:{(16+e)*40}")


def phi_finish(V):
    R = V.T + 40
    o = []
    for k in range(6):
        o += L(f"v_lshl_or_b32 v{V.APH+k}, v{R+2*k+1}, 16, v{R+2*k}")
    o += L(f"v_mov_b32 v{V.APH+6}, 0\nv_mov_b32 v{V.APH+7}, 0")
    return o


def late_loads(V, spin):
    t = V.T
    CS = t + 4
    pre = L(f"v_lshlrev_b32 v{t}, 2, v1")
    pre += [Bundle(L(f"s_cmp_eq_u32 s{s_w}, 0\ns_cselect_b32 s{s_st}, 0, {OOB}") +
                   [Ins(f"buffer_load_dword v{t+1}, v{t}, s[{sDBG}:{sDBG+3}], s{s_st} offen sc1")])]
    chk = L(f"s_cmp_eq_u32 s{s_w}, 0\ns_cselect_b64 s[{s_t0}:{s_t1}], -1, 0\nv_cmp_ne_u32 vcc, 0x01010101, v{t+1}\ns_and_b64 vcc, vcc, s[{s_t0}:{s_t1}]\ns_cbranch_vccnz {spin}\n{spin}_go:")
    o = []
    for b in range(V.NB):
        r = V.ST + 2 * b
        o += [Bundle(L(f"s_add_u32 s{s_st}, s{s_b0}, {b}\ns_lshl_b32 s{s_st}, s{s_st}, 8") +
                     [Ins(f"buffer_load_dwordx2 v[{r}:{r+1}], v{V.vSTo}, s[{sST}:{sST+3}], s{s_st} offen sc1")])]
    for tau in range(V.NT):
        for i in range(5):
            o += [Ins(f"buffer_load_dword v{CS+6*tau+i}, v{t}, s[{sCSP}:{sCSP+3}], 0 offen offset:{1280*tau + 256*i} sc1")]
    for b in range(V.NB):
        o += L(f"v_accvgpr_write_b32 a{V.BX+4*b+2}, 0\nv_accvgpr_write_b32 a{V.BX+4*b+3}, 0")
    o += [Gap(2 * V.NT * V.NB)]
    for tau in range(V.NT):
        c = CS + 6 * tau
        z = c + 5
        o += L(f"v_add_f32 v{c}, v{c}, v{c+1}\nv_add_f32 v{c+2}, v{c+2}, v{c+3}\nv_add_f32 v{c}, v{c}, v{c+4}\nv_add_f32 v{z}, v{c}, v{c+2}")
        o += swap_add(z, c + 4, 32)
        o += L(f"v_cmp_gt_u32 vcc, 32, v1\nv_cndmask_b32 v{z}, 0, v{z}, vcc")
        o += L(f"v_cvt_pk_bf16_f32 v{c+1}, v{z}, 0\nv_lshlrev_b32 v{c}, 16, v{c+1}\nv_sub_f32 v{c}, v{z}, v{c}\nv_cvt_pk_bf16_f32 v{c}, v{z}, v{c}\nv_mov_b32 v{c+2}, 0\nv_mov_b32 v{c+3}, 0")
    B = t + 2
    for b in range(V.NB):
        m = V.ST + 2 * b
        o += L(f"v_cvt_pk_bf16_f32 v{B}, -v{m}, -v{m}\nv_lshlrev_b32 v{B+1}, 16, v{B}\nv_sub_f32_e64 v{B+1}, -v{m}, v{B+1}\nv_cvt_pk_bf16_f32 v{B+1}, v{B+1}, 0")
        o += L(f"v_accvgpr_write_b32 a{V.BX+4*b}, v{B}\nv_accvgpr_write_b32 a{V.BX+4*b+1}, v{B+1}")
    tail = L(f"{spin}:\ns_mov_b32 s{s_t3}, 0x40000\n{spin}_loop:\ns_sleep 2\nbuffer_load_dword v{t+1}, v{t}, s[{sDBG}:{sDBG+3}], 0 offen sc1\n"
             f"s_waitcnt vmcnt(0)\nv_cmp_ne_u32 vcc, 0x01010101, v{t+1}\ns_nop 3\ns_cbranch_vccz {spin}_go\n"
             f"s_sub_u32 s{s_t3}, s{s_t3}, 1\ns_cmp_lg_u32 s{s_t3}, 0\ns_cbranch_scc1 {spin}_loop\ns_branch {spin}_go")
    return pre, chk, o, tail, CS


def epi_ffn(V, b):
    r = V.ST + 2 * b + 1
    T = V.T
    rr = T + 32 + 2 * b
    o = L(f"v_mul_f32 v{rr}, v{r}, v{r}")
    o += L(f"s_add_u32 s{s_st}, s{s_b0}, {b}\ns_mul_i32 s{s_st}, s{s_st}, {2*NS_F*1024}\ns_add_u32 s{s_st}, s{s_st}, s{s_out}")
    for tau in range(V.NT):
        a = V.acc(b, tau)
        for e in range(8):
            o += L(f"v_max_f32 v{a+e}, 0, v{a+e}")
        for e in range(0, 8, 2):
            o += L(f"v_pk_mul_f32 v[{a+8+e}:{a+9+e}], v[{a+8+e}:{a+9+e}], v[{rr}:{rr+1}] op_sel_hi:[1,0]")
        for e in range(0, 8, 2):
            o += L(f"v_pk_mul_f32 v[{a+e}:{a+e+1}], v[{a+e}:{a+e+1}], v[{a+8+e}:{a+9+e}]")
        for k in range(4):
            o += L(f"v_cvt_pk_bf16_f32 v{a+8+k}, v{a+2*k}, v{a+2*k+1}")
        o += [Ins(f"buffer_store_dwordx4 v[{a+8}:{a+11}], v{V.vOut}, s[{sO1}:{sO1+3}], s{s_st} offen offset:{512*tau} sc1")]
    return o


PVW = 6144


def epi_att(V, b):
    r = V.ST + 2 * b + 1
    A, Bq = V.acc(b, 0), V.acc(b, 1)
    T = V.T
    PB, PH, c, one, PV = T, T + 8, T + 24, T + 25, T + 26
    o = []
    def phi(src):
        q = []
        for k in range(8):
            q += L(f"v_cvt_pk_bf16_f32 v{PB+k}, v{src+2*k}, v{src+2*k+1}")
        q += [Ins(f"v_mfma_f32_32x32x16_bf16 {rng('v',PH,16)}, {rng('v',V.APH,4)}, {rng('v',PB,4)}, 0"),
              Ins(f"v_mfma_f32_32x32x16_bf16 {rng('v',PH,16)}, {rng('v',V.APH+4,4)}, {rng('v',PB+4,4)}, {rng('v',PH,16)}")]
        return q
    o += phi(A)
    o += L(f"v_mul_f32 v{c}, 0x3fb8aa3b, v{r}")
    for k in range(8, 16):
        o += L(f"v_mul_f32 v{A+k}, v{A+k}, v{r}")
    for k in range(12, 16):
        o += L(f"v_mul_f32 v{PV+k-12}, v{Bq+k}, v{r}")
    o += L(f"v_cvt_pk_bf16_f32 v{PV+4}, v{PV}, v{PV+1}\nv_cvt_pk_bf16_f32 v{PV+5}, v{PV+2}, v{PV+3}")
    o += L(f"v_cvt_pk_bf16_f32 v{PV}, v{A+12}, v{A+13}\nv_cvt_pk_bf16_f32 v{PV+1}, v{A+14}, v{A+15}")
    o += L(f"v_cvt_pk_bf16_f32 v{PV+2}, v{A+8}, v{A+9}\nv_cvt_pk_bf16_f32 v{PV+3}, v{A+10}, v{A+11}")
    o += L(f"v_cmp_lt_f32 vcc, 0, v{r}\nv_mov_b32 v{one}, 0x3f80\nv_cndmask_b32 v{one}, 0, v{one}, vcc")
    o += L(f"v_cmp_gt_u32 vcc, 32, v1\nv_cndmask_b32 v{PV+2}, v{PV+2}, v{one}, vcc\nv_cndmask_b32 v{PV+3}, v{PV+3}, 0, vcc")
    o += [Ins(f"ds_write_b64 v{V.vVW}, v[{PV}:{PV+1}]"), Ins(f"ds_write_b64 v{V.vVW2}, v[{PV+2}:{PV+3}]"),
          Ins(f"ds_write_b64 v{V.vVW}, v[{PV+4}:{PV+5}] offset:24")]
    for k in range(10):
        o += L(f"v_mul_f32 v{PH+k}, v{PH+k}, v{c}")
    o += L(f"s_add_u32 s{s_st}, s{s_b0}, {b}\ns_mul_i32 s{s_st}, s{s_st}, 2560")
    o += [Ins(f"buffer_store_dwordx4 v[{PH}:{PH+3}], v{V.vOut}, s[{sO1}:{sO1+3}], s{s_st} offen sc1"),
          Ins(f"buffer_store_dwordx4 v[{PH+4}:{PH+7}], v{V.vOut}, s[{sO1}:{sO1+3}], s{s_st} offen offset:1024 sc1"),
          Ins(f"buffer_store_dwordx2 v[{PH+8}:{PH+9}], v{V.vOut+1}, s[{sO1}:{sO1+3}], s{s_st} offen offset:2048 sc1")]
    o += phi(Bq)
    for k in range(10):
        o += L(f"v_mul_f32 v{PH+k}, v{PH+k}, v{c}")
    P = Bq
    o += softmax_phi(PH, P, T, ep=[A + i for i in range(10)], em=[A + 10 + i for i in range(6)] + [T + 4 + i for i in range(4)])
    o += [Ins(f"ds_write_b128 v{V.vPW}, v[{P}:{P+3}]"), Ins(f"ds_write_b128 v{V.vPW}, v[{P+4}:{P+7}] offset:32"),
          Ins(f"ds_write_b64 v{V.vPW}, v[{P+8}:{P+9}] offset:64")]
    FA, FB = A, T
    for bt in range(2):
        for x in range(2):
            o.append(Ins(f"ds_read_b64_tr_b16 v[{FB+4*bt+2*x}:{FB+4*bt+2*x+1}], v{V.vVA} offset:{x*4*72 + 32*bt}"))
    for a in range(3):
        for x in range(2):
            o.append(Ins(f"ds_read_b64_tr_b16 v[{FA+4*a+2*x}:{FA+4*a+2*x+1}], v{V.vPA} offset:{x*4*112 + 32*a}"))
    for a in range(3):
        for bt in range(2):
            kv = V.KV + 4 * (2 * a + bt)
            o.append(Ins(f"v_mfma_f32_16x16x32_bf16 a[{kv}:{kv+3}], v[{FA+4*a}:{FA+4*a+3}], v[{FB+4*bt}:{FB+4*bt+3}], a[{kv}:{kv+3}]"))
    return o


def gen_body(p, V, st_, tails):
    T, lane = V.T, 1
    ffn = V.kind == "ffn"
    tmp = V.ACC
    NT, NB = V.NT, V.NB
    p(f"v_lshrrev_b32 v{tmp}, 3, v{lane}\ns_lshl_b32 s{s_t0}, s{s_w}, 3\nv_add_u32 v{tmp}, s{s_t0}, v{tmp}")
    p(f"v_lshrrev_b32 v{tmp+1}, 1, v{tmp}\nv_xor_b32 v{tmp+1}, v{tmp+1}, v{lane}\nv_and_b32 v{tmp+1}, 7, v{tmp+1}\nv_lshlrev_b32 v{tmp+1}, 4, v{tmp+1}")
    p(f"v_mul_u32_u24 v{tmp}, 1280, v{tmp}\nv_add_u32 v{V.vXD}, v{tmp}, v{tmp+1}")
    if ffn:
        p(f"s_and_b32 s{s_t0}, s{s_w}, 1\ns_lshl_b32 s{s_t0}, s{s_t0}, 3\ns_lshr_b32 s{s_t1}, s{s_w}, 1\ns_lshl_b32 s{s_t1}, s{s_t1}, 2")
        for n in range(3):
            p(f"v_add_u32 v{tmp}, {64*n}, v{lane}\nv_mul_u32_u24 v{tmp+1}, 2731, v{tmp}\nv_lshrrev_b32 v{tmp+1}, 16, v{tmp+1}")
            p(f"v_mul_u32_u24 v{tmp+2}, 24, v{tmp+1}\nv_sub_u32 v{tmp+2}, v{tmp}, v{tmp+2}")
            p(f"v_and_b32 v{tmp+3}, 2, v{tmp+1}\nv_or_b32 v{tmp+3}, s{s_t1}, v{tmp+3}\nv_xor_b32 v{tmp+2}, v{tmp+2}, v{tmp+3}")
            p(f"v_add_u32 v{tmp+1}, s{s_t0}, v{tmp+1}\nv_mul_u32_u24 v{tmp+1}, 3456, v{tmp+1}\nv_lshl_add_u32 v{tmp+1}, v{tmp+2}, 4, v{tmp+1}")
            p(f"v_subrev_u32 v{V.vWD+n}, {1024*n}, v{tmp+1}" if n else f"v_mov_b32 v{V.vWD}, v{tmp+1}")
        p(f"s_mul_i32 s{s_t0}, s{s_cb}, 384\ns_mul_i32 s{s_mw}, s{s_w}, 3072")
    else:
        for i in range(2):
            p(f"v_lshrrev_b32 v{tmp}, 5, v{lane}\nv_add_u32 v{tmp}, {2*i}, v{tmp}")
            p(f"v_lshlrev_b32 v{tmp+1}, 2, v{tmp}\nv_and_b32 v{tmp+2}, 31, v{lane}\nv_xor_b32 v{tmp+1}, v{tmp+1}, v{tmp+2}")
            p(f"v_mul_u32_u24 v{tmp+2}, 6554, v{tmp+1}\nv_lshrrev_b32 v{tmp+2}, 16, v{tmp+2}")
            p(f"v_mul_u32_u24 v{tmp+3}, 1120, v{tmp+2}\nv_lshl_add_u32 v{tmp+3}, v{tmp+1}, 4, v{tmp+3}")
            p(f"s_lshl_b32 s{s_t0}, s{s_w}, 2\nv_add_u32 v{tmp}, s{s_t0}, v{tmp}\nv_mul_u32_u24 v{tmp}, 3840, v{tmp}\nv_add_u32 v{tmp}, v{tmp}, v{tmp+3}")
            if i:
                p(f"v_subrev_u32 v{tmp}, 1024, v{tmp}")
            p(f"v_cmp_gt_u32 vcc, 30, v{tmp+1}\nv_mov_b32 v{tmp+2}, {OOB}\nv_cndmask_b32 v{V.vWD+i}, v{tmp+2}, v{tmp}, vcc")
        p(f"s_mul_i32 s{s_t0}, s{s_cb}, 160\ns_lshl_b32 s{s_mw}, s{s_w}, 11")
    p(f"s_mul_i32 s{s_jw}, s{s_j0}, {64*V.stride}\ns_add_u32 s{s_jw}, s{s_jw}, s{s_t0}\ns_add_u32 s{s_wlim}, s{s_t0}, {640*V.stride}")
    p(f"s_mul_i32 s{s_t0}, s{s_b0}, 40960\ns_lshl_b32 s{s_jx}, s{s_j0}, 7\ns_add_u32 s{s_jx}, s{s_jx}, s{s_t0}\ns_add_u32 s{s_xlim}, s{s_t0}, 1280")
    p(f"s_lshl_b32 s{s_mx}, s{s_w}, 10")
    first = [dma_x(V, 0, 0), dma_w(V, 0)] + [dma_x(V, 0, b) for b in range(1, NB)]
    for u in first:
        p.extend(flat(u))
    st_.stamp()
    srd(p, sST, 22, STATS_OFF, S * 8)
    srd(p, sKV, 22, STATS_OFF, FLAG_OFF - STATS_OFF + 4096)
    srd(p, sW2, 22, W2P_OFF, 8 * NS_ALL * 5120)
    p(f"s_mov_b32 s{sDBG}, s20\ns_mov_b32 s{sDBG+1}, s21\ns_mov_b32 s{sDBG+2}, 256\ns_mov_b32 s{sDBG+3}, 0x20000")
    p(f"s_lshl_b32 s{s_t0}, s{s_cb}, 2\ns_add_u32 s{s_t0}, s{s_t0}, s{s_w}")
    if not ffn:
        p(f"s_add_u32 s{s_t0}, s{s_t0}, 36")
    p(f"s_mul_i32 s{s_t0}, s{s_t0}, 3840\ns_add_u32 s{s_t0}, s{s_t0}, {CSP_OFF}")
    srd(p, sCSP, 22, f"s{s_t0}", 3840)
    x0 = tmp + 10
    p(f"v_and_b32 v{x0}, 31, v{lane}\nv_lshrrev_b32 v{x0+1}, 1, v{x0}\nv_lshrrev_b32 v{x0+2}, 5, v{lane}\nv_xor_b32 v{x0+1}, v{x0+1}, v{x0+2}")
    p(f"v_and_b32 v{x0+1}, 7, v{x0+1}\nv_lshlrev_b32 v{x0+1}, 4, v{x0+1}\nv_lshl_add_u32 v{x0+1}, v{x0}, 7, v{x0+1}")
    for u in range(4):
        p(f"v_xor_b32 v{V.vXA+u}, {32*u}, v{x0+1}")
    p(f"v_lshlrev_b32 v{V.vSTo}, 3, v{x0}")
    if ffn:
        p(f"v_bfe_u32 v{tmp}, v{lane}, 2, 2")
        p(f"v_lshrrev_b32 v{tmp+1}, 5, v{lane}\nv_lshl_add_u32 v{tmp+1}, v{tmp+1}, 3, v{tmp}")
        p(f"v_bfe_u32 v{tmp+2}, v{lane}, 4, 1")
        p(f"v_and_b32 v{tmp+3}, 1, v{lane}\nv_bfe_u32 v{tmp+4}, v{lane}, 1, 1")
        p(f"v_and_b32 v{tmp+5}, 2, v{tmp}\nv_lshl_or_b32 v{tmp+5}, v{tmp+2}, 2, v{tmp+5}")
        p(f"v_mul_u32_u24 v{tmp+6}, 6144, v{tmp+2}\nv_mul_u32_u24 v{tmp+7}, 384, v{tmp+1}\nv_add_u32 v{tmp+6}, v{tmp+6}, v{tmp+7}\nv_lshl_add_u32 v{tmp+6}, v{tmp+4}, 3, v{tmp+6}")
        p(f"v_add_u32 v{tmp+6}, {V.WR0}, v{tmp+6}")
        for tau in range(3):
            p(f"s_mul_i32 s{s_t0}, s{s_w}, 6\ns_add_u32 s{s_t0}, s{s_t0}, {2*tau}\nv_add_u32 v{tmp+7}, s{s_t0}, v{tmp+3}")
            p(f"v_xor_b32 v{tmp+7}, v{tmp+7}, v{tmp+5}\nv_lshl_add_u32 v{V.vWT+2*tau}, v{tmp+7}, 4, v{tmp+6}")
            p(f"v_add_u32 v{V.vWT+2*tau+1}, {5*V.WREG}, v{V.vWT+2*tau}")
        p(f"v_bfe_u32 v{tmp+1}, v{lane}, 4, 1\nv_mul_u32_u24 v{tmp+1}, {NS_F*1024}, v{tmp+1}\nv_lshrrev_b32 v{tmp+2}, 5, v{lane}\nv_lshl_add_u32 v{tmp+1}, v{tmp+2}, 8, v{tmp+1}")
        p(f"v_and_b32 v{tmp+2}, 15, v{lane}\nv_lshl_add_u32 v{V.vOut}, v{tmp+2}, 4, v{tmp+1}")
        p(f"s_mul_i32 s{s_out}, s{s_cb}, 6144\ns_mul_i32 s{s_t0}, s{s_w}, 1536\ns_add_u32 s{s_out}, s{s_out}, s{s_t0}")
        srd(p, sO1, 22, H_OFF, NTB16 * NS_F * 1024)
    else:
        def beta(dst, slot, tau, t):
            p(f"v_lshrrev_b32 v{t}, 1, v{slot}\nv_and_b32 v{t+1}, 1, v{slot}")
            p(f"v_lshl_add_u32 v{t+2}, v{t}, 1, v{t+1}\nv_lshlrev_b32 v{t+2}, 3, v{t+2}\nv_add_u32 v{t+2}, {160*tau}, v{t+2}")
            if tau == 0:
                p(f"v_lshlrev_b32 v{t+3}, 3, v{t+1}\nv_add_u32 v{t+3}, 320, v{t+3}\nv_mov_b32 v{dst}, {320+16}")
            else:
                p(f"v_lshlrev_b32 v{t+3}, 3, v{t+1}\nv_add_u32 v{t+3}, {320+24}, v{t+3}\nv_mov_b32 v{dst}, {320+32}")
            p(f"v_cmp_gt_u32 vcc, 5, v{slot}\nv_cndmask_b32 v{dst}, v{dst}, v{t+2}, vcc")
            p(f"v_cmp_lt_u32 vcc, 5, v{slot}\nv_cndmask_b32 v{dst}, v{dst}, v{t+3}, vcc")
            p(f"s_mul_i32 s{s_t0}, s{s_w}, 40\nv_add_u32 v{dst}, s{s_t0}, v{dst}")
        p(f"v_bfe_u32 v{tmp}, v{lane}, 4, 1\nv_and_b32 v{tmp+1}, 3, v{lane}\nv_lshl_add_u32 v{tmp}, v{tmp}, 2, v{tmp+1}")
        p(f"v_bfe_u32 v{tmp+1}, v{lane}, 2, 2")
        p(f"v_lshrrev_b32 v{tmp+2}, 5, v{lane}\nv_lshl_add_u32 v{tmp+2}, v{tmp+2}, 3, v{tmp+1}\nv_lshlrev_b32 v{tmp+2}, 9, v{tmp+2}\nv_add_u32 v{tmp+2}, {V.WR0}, v{tmp+2}")
        for tau in range(2):
            beta(tmp + 3, tmp, tau, tmp + 12)
            p(f"v_lshlrev_b32 v{tmp+4}, 6, v{tmp+1}\nv_xor_b32 v{tmp+4}, v{tmp+4}, v{tmp+3}\nv_add_u32 v{V.vWT+tau}, v{tmp+4}, v{tmp+2}")
        p(f"v_lshlrev_b32 v{V.vOut}, 4, v{lane}\nv_lshlrev_b32 v{V.vOut+1}, 3, v{lane}")
        p(f"s_mul_i32 s{s_t0}, s{s_w}, {PVW}")
        p(f"v_and_b32 v{tmp}, 31, v{lane}\nv_lshrrev_b32 v{tmp+1}, 5, v{lane}")
        p(f"v_mul_u32_u24 v{V.vPW}, 112, v{tmp}\nv_lshl_add_u32 v{V.vPW}, v{tmp+1}, 4, v{V.vPW}\nv_add_u32 v{V.vPW}, s{s_t0}, v{V.vPW}")
        p(f"s_add_u32 s{s_t1}, s{s_t0}, 3584")
        p(f"v_mul_u32_u24 v{tmp+2}, 72, v{tmp}\nv_add_u32 v{tmp+2}, s{s_t1}, v{tmp+2}\nv_lshl_add_u32 v{V.vVW}, v{tmp+1}, 3, v{tmp+2}")
        p(f"v_mul_i32_i24 v{tmp+3}, -24, v{tmp+1}\nv_add_u32 v{tmp+3}, 40, v{tmp+3}\nv_add_u32 v{V.vVW2}, v{tmp+2}, v{tmp+3}")
        p(f"v_lshrrev_b32 v{tmp}, 4, v{lane}\nv_lshlrev_b32 v{tmp}, 3, v{tmp}\nv_bfe_u32 v{tmp+1}, v{lane}, 2, 2\nv_add_u32 v{tmp}, v{tmp}, v{tmp+1}")
        p(f"v_and_b32 v{tmp+1}, 3, v{lane}\nv_lshlrev_b32 v{tmp+1}, 3, v{tmp+1}")
        p(f"v_mul_u32_u24 v{V.vPA}, 112, v{tmp}\nv_add3_u32 v{V.vPA}, v{V.vPA}, v{tmp+1}, s{s_t0}")
        p(f"v_mul_u32_u24 v{V.vVA}, 72, v{tmp}\nv_add3_u32 v{V.vVA}, v{V.vVA}, v{tmp+1}, s{s_t1}")
        p(f"s_lshl_b32 s{s_t0}, s{s_cb}, 2\ns_add_u32 s{s_t0}, s{s_t0}, s{s_w}")
        p(f"s_mul_i32 s{s_t1}, s{s_t0}, {NB32*2560}\ns_add_u32 s{s_t1}, s{s_t1}, {LOG_OFF}")
        srd(p, sO1, 22, f"s{s_t1}", NB32 * 2560)
        p(f"s_mul_i32 s{s_t1}, s{s_t0}, 800")
        srd(p, sPHI, 8, f"s{s_t1}", 800)
        for r in range(24):
            p(f"v_accvgpr_write_b32 a{V.KV+r}, 0")
    p(f"v_and_b32 v{tmp}, 31, v{lane}\nv_cmp_eq_u32 vcc, 0, v{lane}\nv_cmp_eq_u32 s[{s_t0}:{s_t1}], 32, v{lane}\ns_or_b64 vcc, vcc, s[{s_t0}:{s_t1}]")
    p(f"v_cmp_eq_u32 s[{s_t0}:{s_t1}], 20, v{tmp}\ns_or_b64 vcc, vcc, s[{s_t0}:{s_t1}]\nv_mov_b32 v{tmp}, 0x3f803f80\nv_cndmask_b32 v{tmp}, 0, v{tmp}, vcc")
    for i in range(4):
        p(f"v_accvgpr_write_b32 a{V.ONES+i}, v{tmp}")
    for u in [dma_w(V, 1), dma_w(V, 2)]:
        p.extend(flat(u))
    stats_issue(p, V)
    pack_issue(p, V)
    if not ffn:
        phi_issue(p, V)
    st_.stamp()
    sc = Sched(p)
    G = NT * NB
    sc.at(dma_w(V, 3) + flat([dma_x(V, 1, b) for b in range(NB)]) + dma_w(V, 4), G + G // 2)
    sc.at(dma_w(V, 5) + dma_w(V, 6) + flat([dma_x(V, 2, b) for b in range(NB)]) + dma_w(V, 7), 2 * G, start=G + G // 2)
    sc.push([Gap(G)] + stats_finish(V) + pack_finish(V) + zero_oflags(V))
    if not ffn:
        sc.push(phi_finish(V))
    sc.push([Mark("pre_cs")])
    pre, chk, late, tail, AX = late_loads(V, f"L_spin_{V.kind}")
    tails.append(tail)
    p.need("w0"); p.need("w1"); p.need("w2"); p.need("x0")
    p("s_barrier")
    for it in reads(V, 0):
        p.add(it)
    FLAG_PH, POLL_PH, CHK_PH = 5, 13, 15
    for s in range(40):
        ph = s >> 1
        if (s & 1) == 0 and ph >= 1:
            for sw in (2 * ph + 1, 2 * ph + 2):
                if sw < 40:
                    p.need(f"w{sw}")
            if (s & 3) == 2 and (s + 2) // 4 < 10:
                p.need(f"x{(s + 2) // 4}")
            if ph == FLAG_PH:
                sc.flush("p0_done")
                p.need("p0")
            if ph == CHK_PH:
                sc.flush()
                p.extend(chk)
            p("s_barrier")
            if ph == FLAG_PH:
                sc.push(flag_store(V))
            if ph == POLL_PH:
                sc.push(pre)
            if ph == CHK_PH:
                sc.push(late)
            batch = []
            for sw in (2 * ph + 6, 2 * ph + 7):
                if 8 <= sw < 40:
                    batch += dma_w(V, sw)
            for sx in (s, s + 1):
                t, b = (sx + 8) >> 2, (sx + 8) & 3
                if 3 <= t < 10:
                    batch += dma_x(V, t, b)
                    if NB == 5 and b == 3:
                        batch += dma_x(V, t, 4)
            if batch:
                sc.at(batch, 2 * G)
        if s == 4:
            sc.push(cs_store(V) + [Mark("p0_done")])
        rd = reads(V, s + 1) if s + 1 < 40 else []
        k = 0
        for tau in range(NT):
            for b in range(NB):
                a = V.acc(b, tau)
                c = "0" if s == 0 else f"v[{a}:{a+15}]"
                g = [Ins(f"v_mfma_f32_32x32x16_bf16 v[{a}:{a+15}], {rng('a', V.wf(s, tau), 4)}, {rng('a', V.xf(s, b), 4)}, {c}")]
                g += rd[k:k + 1]; k += 1
                sc.group(g)
            if s < 4:
                ca = rng('a', V.CSA + 4 * tau, 4)
                sc.group([Ins(f"v_mfma_f32_16x16x32_bf16 {ca}, {rng('a', V.ONES, 4)}, {rng('a', V.wf(s, tau), 4)}, {'0' if s == 0 else ca}")] + rd[k:k + 1])
                k += 1 if k < len(rd) else 0
        for it in rd[k:]:
            p.add(it)
        if s % 8 == 7:
            st_.stamp()
    sc.flush_forced()
    sc.flush()
    for b in range(NB):
        for tau in range(NT):
            a = V.acc(b, tau)
            p(f"v_mfma_f32_32x32x16_bf16 v[{a}:{a+15}], {rng('v', AX+6*tau, 4)}, {rng('a', V.BX+4*b, 4)}, v[{a}:{a+15}]")
    st_.stamp()
    if not ffn:
        p("s_barrier")
    for b in range(NB):
        for it in (epi_ffn if ffn else epi_att)(V, b):
            if it.kind not in ("gap", "mark"):
                p.add(it)
        if b == 0:
            st_.stamp()
    if not ffn:
        p(f"v_and_b32 v{T}, 15, v{lane}\nv_mul_u32_u24 v{T+1}, 192, v{T}\nv_lshrrev_b32 v{T+2}, 4, v{lane}\nv_lshl_add_u32 v{T+1}, v{T+2}, 4, v{T+1}")
        p(f"v_cmp_gt_u32 vcc, 5, v{T}\nv_mov_b32 v{T+2}, {OOB}\nv_cndmask_b32 v{T+2}, v{T+2}, v{T+1}, vcc")
        p(f"s_lshl_b32 s{s_t0}, s{s_cb}, 4\ns_add_u32 s{s_t0}, s{s_t0}, s{s_pg}\ns_lshl_b32 s{s_t0}, s{s_t0}, 2\ns_add_u32 s{s_t0}, s{s_t0}, s{s_w}\ns_lshl_b32 s{s_t0}, s{s_t0}, 12")
        p(f"s_add_u32 s{s_t0}, s{s_t0}, {KVP_OFF}")
        srd(p, sKV, 22, f"s{s_t0}", 4096)
        for a in range(3):
            for bt in range(2):
                kv = V.KV + 4 * (2 * a + bt)
                p(f"buffer_store_dwordx4 a[{kv}:{kv+3}], v{T+1+bt}, s[{sKV}:{sKV+3}], 0 offen offset:{64*a + 3072*bt} sc1")


def gen_ka(name="ka_kernel", prof=False):
    p = Prog()
    st_ = Stamps(p, prof, first=PROF_FIRST)
    tails = []
    p(f"{name}:")
    p("s_cmp_ge_u32 s2, 256\ns_cbranch_scc1 L_ka_end")
    p("s_load_dwordx4 s[4:7], s[0:1], 0\ns_load_dwordx4 s[8:11], s[0:1], 16\ns_load_dwordx4 s[12:15], s[0:1], 40\n"
      "s_load_dwordx2 s[16:17], s[0:1], 56\ns_load_dwordx4 s[20:23], s[0:1], 72")
    p(f"s_and_b32 s{s_e}, s2, 7\ns_lshl_b32 s{s_e}, s{s_e}, 5\ns_lshr_b32 s{s_t0}, s2, 3\ns_add_u32 s{s_e}, s{s_e}, s{s_t0}")
    p(f"v_lshrrev_b32 v1, 6, v0\ns_nop 0\nv_readfirstlane_b32 s{s_w}, v1\nv_and_b32 v1, 63, v0")
    p(f"s_cmp_ge_u32 s{s_e}, {N_FFN}\ns_cbranch_scc1 L_ka_att")
    p(f"s_lshr_b32 s{s_cb}, s{s_e}, 4\ns_and_b32 s{s_pg}, s{s_e}, 15\ns_lshl_b32 s{s_b0}, s{s_pg}, 2")
    p(f"s_mul_i32 s{s_j0}, s{s_cb}, 3\ns_add_u32 s{s_j0}, s{s_j0}, s{s_pg}\ns_mul_hi_u32 s{s_t0}, s{s_j0}, 0x1999999a\ns_mul_i32 s{s_t0}, s{s_t0}, 10\ns_sub_u32 s{s_j0}, s{s_j0}, s{s_t0}")
    p("s_waitcnt lgkmcnt(0)")
    st_.stamp()
    srd(p, sX, 4, 0, S * D * 2)
    p(f"s_cmp_ge_u32 s{s_w}, 2\ns_cselect_b32 s{sW}, s14, s12\ns_cselect_b32 s{sW+1}, s15, s13\ns_mov_b32 s{sW+2}, {D*F*2}\ns_mov_b32 s{sW+3}, 0x20000")
    n0 = st_.n
    gen_body(p, Var("ffn"), st_, tails)
    if prof:
        p("s_waitcnt vmcnt(0)")
    st_.stamp()
    p("s_branch L_ka_fin")
    p.settle()
    p("L_ka_att:")
    p("s_waitcnt vmcnt(0) lgkmcnt(0)")
    st_.n = 0
    p(f"s_sub_u32 s{s_t0}, s{s_e}, {N_FFN}\ns_mul_hi_u32 s{s_cb}, s{s_t0}, {(2**32 + NPG_ATT - 1)//NPG_ATT}\ns_mul_i32 s{s_t1}, s{s_cb}, {NPG_ATT}\ns_sub_u32 s{s_pg}, s{s_t0}, s{s_t1}\ns_mul_i32 s{s_b0}, s{s_pg}, 5")
    p(f"s_mul_i32 s{s_j0}, s{s_cb}, 3\ns_add_u32 s{s_j0}, s{s_j0}, s{s_pg}\ns_mul_hi_u32 s{s_t0}, s{s_j0}, 0x1999999a\ns_mul_i32 s{s_t0}, s{s_t0}, 10\ns_sub_u32 s{s_j0}, s{s_j0}, s{s_t0}")
    st_.stamp()
    srd(p, sX, 4, 0, S * D * 2)
    srd(p, sW, 6, 0, D * 3 * D * 2)
    gen_body(p, Var("att"), st_, tails)
    if prof:
        p("s_waitcnt vmcnt(0)")
    st_.stamp()
    p("L_ka_fin:")
    st_.flush(22, 1, s_w)
    p("L_ka_end:\ns_endpgm")
    tp = Prog()
    for t in tails:
        tp.extend(t)
    body = p.finish() + "\n" + "\n".join(("" if i.kind == "label" else "  ") + i.text for i in tp.items)
    return body, dict(n=len(p.items), nops=p.nops_added, waits=p.waits_added, stamps=st_.n)


if __name__ == "__main__":
    import k2gen
    for k in ("ffn", "att"):
        V = Var(k); print(k, "temps start", V.T, "count", V.nT, "STG", V.STG)
    b, i = gen_ka(); print(i)
    open("ka.s", "w").write(k2gen.wrap([("ka_kernel", b, 256, 256, 163840, 512, 256)]))
```

```python
import kagen, k2gen
def build_text(prof=False):
    b1, i1 = kagen.gen_ka(prof=prof)
    b2, i2 = k2gen.gen_k2(prof=prof)
    ks = [("ka_kernel", b1, 256, 256, 163840, 512, 256),
          ("k2_kernel", b2, 256, 256, 86016, 512, 256)]
    return k2gen.wrap(ks), ks, (i1, i2)
NSTAMPS = [(11, "ka", 1), (7, "k2", 2)]
def GROUPS(nm, e):
    import numpy as np
    if nm == "ka":
        return [("ka ffn", e < 144, 11), ("ka att", (e >= 144) & ((e - 144) % 14 < 13), 11)]
    return [(nm, np.ones(256, bool), 7)]
if __name__ == "__main__":
    import sys
    txt, ks, info = build_text(False)
    hdr = open("parallel_sum__linear_kernel_hedgehog__glu_gated_reglu__prompt.s.ref").read().split("\n")
    keep = [l for l in hdr if l.startswith(";") and "@launch" not in l and "Override launch" not in l and "grid=ceil" not in l]
    keep = keep[:12]
    out = "\n".join(keep) + "\n" + txt
    path = sys.argv[1] if len(sys.argv) > 1 else "parallel_sum__linear_kernel_hedgehog__glu_gated_reglu__prompt.s"
    open(path, "w").write(out)
    print(info, len(out))
```

```python
import re

_REG1 = re.compile(r"^-?\|?(v|a|s)(\d+)\|?$")
_REGN = re.compile(r"^-?\|?(v|a|s)\[(\d+):(\d+)\]\|?$")
_ABS = re.compile(r"^-?abs\((.*)\)$")


def regs_of(tok):
    tok = tok.strip()
    m = _ABS.match(tok)
    if m:
        tok = m.group(1)
    m = _REG1.match(tok)
    if m:
        return [m.group(1) + m.group(2)]
    m = _REGN.match(tok)
    if m:
        return [m.group(1) + str(i) for i in range(int(m.group(2)), int(m.group(3)) + 1)]
    if tok == "vcc":
        return ["vcc"]
    if tok == "exec":
        return ["exec"]
    if tok == "m0":
        return ["m0"]
    return []


def split_ops(s):
    out, depth, cur = [], 0, ""
    for ch in s:
        if ch in "[(":
            depth += 1
        if ch in "])":
            depth -= 1
        if ch == "," and depth == 0:
            out.append(cur.strip())
            cur = ""
        else:
            cur += ch
    if cur.strip():
        out.append(cur.strip())
    return out


TRANS = ("v_exp_f32", "v_log_f32", "v_rcp_f32", "v_rsq_f32", "v_sqrt_f32", "v_sin_f32", "v_cos_f32")
SALU_NODST = ("s_cmp_", "s_waitcnt", "s_barrier", "s_nop", "s_branch", "s_cbranch", "s_setprio", "s_sleep",
              "s_endpgm", "s_bitcmp")
SALU_SCC_W = ("s_add_", "s_sub_", "s_addc_", "s_subb_", "s_and_", "s_or_", "s_xor_", "s_lshl_", "s_lshr_",
              "s_ashr_", "s_cmp_", "s_min_", "s_max_", "s_andn2", "s_bitcmp", "s_not_", "s_addk", "s_bfe_",
              "s_orn2")
SALU_SCC_R = ("s_cselect", "s_addc_", "s_subb_", "s_cbranch_scc")


class Ins:
    __slots__ = ("text", "mn", "kind", "wr", "rd", "passes", "tok", "srcC", "accrw", "cost", "wide", "mods", "note", "mem")

    def __init__(self, text, tok=None, cost=None):
        self.text = text.strip()
        self.tok = tok
        self.passes = 0
        self.srcC = []
        self.wide = False
        self.note = None
        self.mem = None
        t = self.text
        if t.endswith(":"):
            self.mn, self.kind, self.wr, self.rd, self.cost, self.mods = t, "label", [], [], 0, ""
            return
        parts = t.split(None, 1)
        mn = parts[0]
        self.mn = mn
        rest = parts[1] if len(parts) > 1 else ""
        ops = split_ops(rest)
        mods = ""
        if ops:
            last = ops[-1].split(None, 1)
            if len(last) > 1:
                ops[-1] = last[0]
                mods = last[1]
        self.mods = mods
        R = [regs_of(o) for o in ops]
        wr, rd = [], []
        if mn.startswith("v_mfma"):
            self.kind = "mfma"
            wr = R[0]
            rd = R[1] + R[2] + R[3]
            self.srcC = R[3]
            self.passes = 8 if "32x32x16" in mn else (4 if "16x16x32" in mn else (2 if "4x4x4" in mn else 8))
            c = 8
        elif mn.startswith("v_"):
            self.kind = "trans" if mn.startswith(TRANS) else "valu"
            c = 8 if self.kind == "trans" else 4
            if mn.startswith("v_cmp"):
                wr = R[0]
                rd = sum(R[1:], [])
            elif mn.startswith("v_permlane") and "swap" in mn:
                wr = R[0] + R[1]
                rd = R[0] + R[1]
            elif mn.startswith(("v_add_co", "v_sub_co", "v_addc_co", "v_subb_co")):
                wr = R[0] + R[1]
                rd = sum(R[2:], [])
            else:
                wr = R[0]
                rd = sum(R[1:], [])
                if mn.startswith(("v_fmac", "v_dot2c", "v_mac", "v_writelane")) or "_dpp" in mn or "d16" in mn:
                    rd = rd + R[0]
                if mn.startswith("v_cndmask") and len(ops) == 3:
                    rd = rd + ["vcc"]
            if not mn.startswith(("v_readlane", "v_readfirstlane", "v_writelane")):
                rd = rd + ["exec"]
        elif mn.startswith("ds_"):
            self.kind = "ds"
            if mn.startswith("ds_read") or mn.startswith(("ds_bpermute", "ds_swizzle")):
                wr = R[0]
                rd = sum(R[1:], [])
                if "d16" in mn:
                    rd = rd + R[0]
                c = 12 if "b128" in mn else 8
            else:
                rd = sum(R, [])
                c = 22 if "b128" in mn else (12 if "b64" in mn else 8)
        elif mn.startswith(("buffer_", "global_")):
            self.kind = "vmem"
            c = 8
            is_lds = re.search(r"\blds\b", mods) is not None
            if "load" in mn and not is_lds:
                wr = R[0]
                rd = sum(R[1:], [])
                if "d16" in mn:
                    rd = rd + R[0]
            elif "atomic" in mn and "sc0" in mods:
                wr = R[0]
                rd = sum(R, [])
            else:
                rd = sum(R, [])
                if is_lds:
                    rd = rd + ["m0"]
                if "store" in mn and ("x4" in mn or "x3" in mn):
                    self.wide = True
        elif mn.startswith("s_load") or mn.startswith(("s_memtime", "s_memrealtime")):
            self.kind = "smem"
            wr = R[0]
            rd = sum(R[1:], [])
            c = 4
        elif mn.startswith("s_"):
            c = 4
            if mn == "s_waitcnt":
                self.kind = "wait"
            elif mn == "s_barrier":
                self.kind = "barrier"
            elif mn == "s_nop":
                self.kind = "nop"
            elif mn.startswith(("s_branch", "s_cbranch", "s_endpgm")):
                self.kind = "branch"
            else:
                self.kind = "salu"
            if mn.startswith(SALU_NODST):
                rd = sum(R, [])
            else:
                wr = R[0]
                rd = sum(R[1:], [])
                if mn.startswith(("s_addk", "s_mulk")):
                    rd = rd + R[0]
            if "saveexec" in mn:
                wr = wr + ["exec", "scc"]
                rd = rd + ["exec"]
            if mn.startswith(SALU_SCC_W):
                wr = wr + ["scc"]
            if mn.startswith(SALU_SCC_R):
                rd = rd + ["scc"]
            if mn.startswith("s_cbranch_vcc"):
                rd = rd + ["vcc"]
            if mn.startswith("s_cbranch_exec"):
                rd = rd + ["exec"]
        else:
            raise ValueError("unknown instruction: " + t)
        self.wr, self.rd = wr, rd
        self.cost = c if cost is None else cost


class Need:
    def __init__(self, tok):
        self.tok = tok
        self.kind = "need"
        self.cost = 0


class Raw:
    def __init__(self, what):
        self.what = what
        self.kind = "raw"
        self.cost = 0


def is_v(r):
    return r[0] in "va" and r[1:].isdigit()


def is_s(r):
    return (r[0] == "s" and r[1:].isdigit()) or r == "vcc"


class Prog:
    def __init__(self):
        self.items = []
        self.nops_added = 0
        self.waits_added = 0

    def __call__(self, text, tok=None, cost=None):
        for line in text.split("\n"):
            line = line.strip()
            if line:
                self.items.append(Ins(line, tok=tok, cost=cost))
        return self

    def add(self, it):
        self.items.append(it)

    def extend(self, its):
        self.items.extend(its)

    def need(self, tok):
        self.items.append(Need(tok))

    def drain(self):
        self.items.append(Ins("s_waitcnt vmcnt(0) lgkmcnt(0)"))

    def settle(self):
        self.items.append(Raw("settle"))

    def resolve_waits(self):
        out = []
        vm_age, lg_age = {}, {}
        smem_pending = set()
        seen_tok = set()

        def bump(d):
            for k in d:
                d[k] += 1

        def apply_wait(vm, lg):
            if vm is not None:
                for k in [k for k, a in vm_age.items() if a >= vm]:
                    del vm_age[k]
            if lg is not None:
                for k in [k for k, a in lg_age.items() if a >= lg]:
                    del lg_age[k]
                if lg == 0:
                    smem_pending.clear()

        def emit_wait(vm, lg):
            parts = []
            if vm is not None:
                vm = min(vm, 63)
                parts.append("vmcnt(%d)" % vm)
            if lg is not None:
                lg = min(lg, 15)
                parts.append("lgkmcnt(%d)" % lg)
            if out and isinstance(out[-1], Ins) and out[-1].kind == "wait" and out[-1].note == "auto":
                pv = re.search(r"vmcnt\((\d+)\)", out[-1].text)
                pl = re.search(r"lgkmcnt\((\d+)\)", out[-1].text)
                if vm is None and pv:
                    vm = int(pv.group(1))
                elif vm is not None and pv:
                    vm = min(vm, int(pv.group(1)))
                if lg is None and pl:
                    lg = int(pl.group(1))
                elif lg is not None and pl:
                    lg = min(lg, int(pl.group(1)))
                out.pop()
                self.waits_added -= 1
                parts = []
                if vm is not None:
                    parts.append("vmcnt(%d)" % vm)
                if lg is not None:
                    parts.append("lgkmcnt(%d)" % lg)
            w = Ins("s_waitcnt " + " ".join(parts))
            w.note = "auto"
            out.append(w)
            self.waits_added += 1
            apply_wait(vm, lg)

        for it in self.items:
            if it.kind == "need":
                k = "tok:" + it.tok
                if it.tok not in seen_tok:
                    raise ValueError("need() before any operation with token " + it.tok)
                vm, lg = vm_age.get(k), lg_age.get(k)
                if vm is not None or lg is not None:
                    emit_wait(vm, lg)
                continue
            if it.kind in ("raw", "label"):
                out.append(it)
                continue
            if it.kind == "wait":
                mv = re.search(r"vmcnt\((\d+)\)", it.text)
                ml = re.search(r"lgkmcnt\((\d+)\)", it.text)
                apply_wait(int(mv.group(1)) if mv else None, int(ml.group(1)) if ml else None)
                out.append(it)
                continue
            touched = set(it.rd) | set(it.wr)
            vm = [vm_age[r] for r in touched if r in vm_age]
            lg = [lg_age[r] for r in touched if r in lg_age]
            sm = any(r in smem_pending for r in touched)
            if vm or lg or sm:
                emit_wait(min(vm) if vm else None, 0 if sm else (min(lg) if lg else None))
            out.append(it)
            if it.tok:
                seen_tok.add(it.tok)
            if it.kind == "vmem":
                bump(vm_age)
                for r in it.wr:
                    vm_age[r] = 0
                if it.tok:
                    vm_age["tok:" + it.tok] = 0
            elif it.kind == "ds":
                bump(lg_age)
                for r in it.wr:
                    lg_age[r] = 0
                if it.tok:
                    lg_age["tok:" + it.tok] = 0
            elif it.kind == "smem":
                for r in it.wr:
                    smem_pending.add(r)
                for k in lg_age:
                    lg_age[k] = 0 if False else lg_age[k]
                if lg_age:
                    raise ValueError("scalar load while LDS ops are outstanding: " + it.text)
        self.items = out

    @staticmethod
    def _need_states(p, c):
        n = 0
        pw, cr, cw = set(p.wr), set(c.rd), set(c.wr)
        vw = {r for r in pw if is_v(r)}
        if p.kind in ("valu", "trans"):
            if c.kind == "mfma" and vw & cr:
                n = max(n, 2)
            if c.kind == "mfma" and "exec" in pw:
                n = max(n, 4)
            if c.mn.startswith("v_permlane") and vw & cr:
                n = max(n, 2)
            if c.mn.startswith(("v_readlane", "v_readfirstlane")) and vw & cr:
                n = max(n, 1)
            if ("_dpp" in c.mn or "row_" in c.mods or "quad_perm" in c.mods) and vw & cr:
                n = max(n, 2)
            sw = {r for r in pw if is_s(r)}
            if sw:
                if c.kind == "vmem" and sw & cr:
                    n = max(n, 5)
                if c.kind in ("valu", "trans") and sw & cr:
                    n = max(n, 4 if c.mn.startswith(("v_readlane", "v_writelane")) else 2)
                if c.kind in ("salu", "branch") and sw & cr:
                    n = max(n, 4)
            if p.kind == "trans" and c.kind in ("valu", "mfma", "vmem", "ds") and vw & cr:
                n = max(n, 1)
        if p.kind == "mfma":
            P = p.passes
            d = set(p.wr)
            if c.kind == "mfma":
                cC = set(c.srcC)
                ab = set(c.rd) - cC
                if d & ab:
                    n = max(n, {2: 5, 4: 8, 8: 12}[P])
                if d & cC:
                    if cC == d and c.passes == P:
                        n = max(n, 2 if P == 2 else 0)
                    else:
                        n = max(n, {2: 4, 4: 6, 8: 10}[P])
                if d & cw and not (cC == d):
                    n = max(n, {2: 5, 4: 8, 8: 12}[P])
            elif c.kind in ("valu", "trans", "vmem", "ds"):
                if d & (cr | cw):
                    n = max(n, {2: 5, 4: 8, 8: 12}[P])
                if c.kind in ("valu", "trans") and set(p.srcC) & cw:
                    n = max(n, {2: 1, 4: 3, 8: 7}[P])
        if p.kind == "salu" and "m0" in pw and c.kind == "vmem" and "m0" in cr:
            n = max(n, 1)
        if p.kind == "salu" and "exec" in pw and c.kind == "mfma":
            n = max(n, 1)
        if p.kind == "vmem" and p.wide:
            data = set(p.rd)
            if c.kind in ("valu", "trans") and {r for r in cw if is_v(r)} & data:
                n = max(n, 2)
            elif c.kind in ("ds", "vmem", "mfma") and {r for r in cw if is_v(r)} & data:
                n = max(n, 1)
        return n

    def resolve_hazards(self):
        out = []
        hist = []

        def advance(k):
            for h in hist:
                h[1] += k
            while hist and hist[0][1] > 24:
                hist.pop(0)

        for it in self.items:
            if it.kind == "raw":
                if it.what == "settle":
                    worst = 0
                    for p, el in hist:
                        need = 0
                        if p.kind == "mfma":
                            need = {2: 5, 4: 8, 8: 12}[p.passes]
                        elif p.kind in ("valu", "trans"):
                            need = 5 if any(is_s(r) for r in p.wr) else 2
                        elif p.kind in ("salu", "vmem"):
                            need = 2
                        worst = max(worst, need - el)
                    while worst > 0:
                        k = min(worst, 16)
                        out.append(Ins("s_nop %d" % (k - 1)))
                        self.nops_added += 1
                        advance(k)
                        worst -= k
                continue
            if it.kind == "label":
                out.append(it)
                continue
            short = 0
            for p, el in hist:
                need = self._need_states(p, it)
                short = max(short, need - el)
            while short > 0:
                k = min(short, 16)
                out.append(Ins("s_nop %d" % (k - 1)))
                self.nops_added += 1
                advance(k)
                short -= k
            out.append(it)
            if it.kind == "nop":
                advance(int(it.text.split()[1]) + 1)
            else:
                advance(1)
            hist.append([it, 0])
        self.items = out

    def finish(self):
        self.resolve_waits()
        self.resolve_hazards()
        return "\n".join(("" if i.kind == "label" else "  ") + i.text for i in self.items)


def interleave(backbone, fillers, gap=32, slack=0):
    out = []
    credit = slack
    fi = 0
    for grp in backbone:
        fixed = 0
        g = gap
        for it in grp:
            out.append(it)
            fixed += it.cost
            if it.kind == "mfma":
                g = it.passes * 4
        credit += g - fixed
        while fi < len(fillers):
            c = fillers[fi].cost
            if c > credit + 2:
                break
            f = fillers[fi]
            out.append(f)
            credit -= c
            fi += 1
        credit = min(credit, 24)
    return out, fillers[fi:]


def L(text, tok=None, cost=None):
    return [Ins(l, tok=tok, cost=cost) for l in text.split("\n") if l.strip()]


class Gap:
    def __init__(self, n):
        self.n = n
        self.kind = "gap"
        self.cost = 0


class Bundle:
    def __init__(self, items):
        self.items = list(items)
        self.kind = "bundle"
        self.cost = sum(i.cost for i in self.items)


class Mark:
    def __init__(self, name):
        self.name = name
        self.kind = "mark"
        self.cost = 0


class Sched:
    def __init__(self, prog):
        self.p = prog
        self.q = []
        self.credit = 0
        self.window = []
        self.hold = 0
        self.slack = 1
        self.fq = []
        self.n = 0
        self.tq = []

    def push(self, items):
        self.q.extend(items)

    def _emit(self, it):
        if it.kind == "bundle":
            for x in it.items:
                self._emit(x)
            return
        self.p.add(it)
        if isinstance(it, Ins):
            self.window.append(it)
            if len(self.window) > 16:
                self.window.pop(0)

    def _clear(self, it):
        if it.kind == "bundle":
            return self._clear(it.items[0])
        if not isinstance(it, Ins):
            return True
        n = len(self.window)
        for i, prev in enumerate(self.window):
            if Prog._need_states(prev, it) > n - 1 - i:
                return False
        return True

    def group(self, grp, fill=True):
        fixed, span = 0, 0
        for it in grp:
            self._emit(it)
            fixed += it.cost
            if it.kind == "mfma":
                span += it.passes * 4
        for ent in self.fq:
            units, left = ent
            k = -(-len(units) // max(left, 1))
            for u in units[:k]:
                for it in u:
                    self._emit(it)
                    fixed += it.cost
            ent[0] = units[k:]
            ent[1] = left - 1
            if k:
                break
        self.fq = [e for e in self.fq if e[0]]
        while self.tq and self.tq[0][0] <= self.n:
            for it in self.tq.pop(0)[1]:
                self._emit(it)
                fixed += it.cost
        self.n += 1
        self.credit = min(self.credit, 0) + max(span, fixed) - fixed
        if self.hold > 0:
            self.hold -= 1
        while fill and self.q and self.hold == 0:
            f = self.q[0]
            if f.kind == "gap":
                self.q.pop(0)
                self.hold = f.n
                continue
            if f.kind == "mark":
                self.q.pop(0)
                continue
            if not self._clear(f):
                break
            if f.kind == "mfma":
                self.q.pop(0)
                self._emit(f)
                self.credit = f.passes * 4 - f.cost
                continue
            if f.cost > self.credit + self.slack and not (f.kind == "bundle" and self.credit >= 12):
                break
            self.q.pop(0)
            self._emit(f)
            self.credit -= f.cost

    def force(self, units, groups):
        self.fq.append([list(units), groups])

    def at(self, units, groups, start=0):
        last = self.tq[-1][0] if self.tq else -1
        lo = max(self.n + start, last)
        span = max(self.n + start + groups - lo, 1)
        for i, u in enumerate(units):
            self.tq.append((lo + (i * span) // len(units), u))

    def flush_forced(self):
        for _, u in self.tq:
            for it in u:
                self._emit(it)
        self.tq = []
        for units, _ in self.fq:
            for u in units:
                for it in u:
                    self._emit(it)
        self.fq = []

    def flush(self, upto=None):
        if upto is not None and not any(f.kind == "mark" and f.name == upto for f in self.q):
            return
        while self.q:
            f = self.q.pop(0)
            if f.kind == "mark":
                if f.name == upto:
                    break
                continue
            if f.kind == "gap":
                continue
            self._emit(f)
        self.credit = 0
        self.hold = 0


def list_schedule(items, lookahead=400):
    segs, cur = [], []
    for it in items:
        if it.kind in ("need", "barrier", "label", "branch", "wait"):
            segs.append(cur); segs.append([it]); cur = []
        elif it.kind in ("gap", "mark"):
            continue
        else:
            cur.append(it)
    segs.append(cur)
    out = []
    for seg in segs:
        if len(seg) <= 1:
            out.extend(seg)
        else:
            out.extend(_list_schedule_segment(seg))
    return out


def _lat(p, c, raw):
    if not raw:
        return p.cost if p.kind != "mfma" else 8
    if p.kind == "mfma":
        base = p.passes * 4
        if c.kind == "mfma" and set(c.srcC) == set(p.wr):
            return base
        return base + 24
    if p.kind == "trans":
        return 16
    if p.kind == "valu":
        return 8
    if p.kind == "ds":
        return 128 if p.wr else 64
    if p.kind == "vmem":
        return 600
    return 8


def _list_schedule_segment(seg):
    n = len(seg)
    preds = [[] for _ in range(n)]
    succs = [[] for _ in range(n)]
    last_w, readers = {}, {}
    mem_w, mem_r, old_r = {}, {}, {}
    flat_items = []
    for i, it in enumerate(seg):
        rd, wr = (set(), set())
        subs = it.items if it.kind == "bundle" else [it]
        for x in subs:
            rd |= set(x.rd) - wr
            wr |= set(x.wr)
        rd.discard("exec")
        deps = {}
        for r in rd:
            if r in last_w:
                deps[last_w[r]] = True
        for r in wr:
            if r in last_w:
                deps.setdefault(last_w[r], False)
            for j in readers.get(r, ()):
                if j != i:
                    deps.setdefault(j, False)
        mem = getattr(it, "mem", None)
        if mem:
            name, mode = mem
            if mode == "r":
                for j in mem_w.get(name, ()):
                    deps[j] = True
                mem_r.setdefault(name, []).append(i)
            else:
                if mem_r.get(name):
                    old_r[name] = mem_r[name]
                    mem_r[name] = []
                    mem_w[name] = []
                for j in old_r.get(name, ()):
                    deps.setdefault(j, False)
                mem_w.setdefault(name, []).append(i)
        for j, raw in deps.items():
            pj = seg[j].items[-1] if seg[j].kind == "bundle" else seg[j]
            ci = it.items[0] if it.kind == "bundle" else it
            l = _lat(pj, ci, raw)
            preds[i].append((j, l)); succs[j].append((i, l))
        for r in wr:
            last_w[r] = i
            readers[r] = []
        for r in rd:
            readers.setdefault(r, []).append(i)
    prio = [0] * n
    for i in range(n - 1, -1, -1):
        prio[i] = max([l + prio[j] for j, l in succs[i]], default=seg[i].cost)
    left = [len(preds[i]) for i in range(n)]
    ready_at = [0] * n
    avail = [i for i in range(n) if left[i] == 0]
    t, mfma_free = 0, 0
    out = []
    while avail:
        def start(i):
            s = ready_at[i]
            if seg[i].kind == "mfma":
                s = max(s, mfma_free)
            return s
        now = [i for i in avail if start(i) <= t]
        if now:
            i = max(now, key=lambda k: (prio[k], -k))
        else:
            i = min(avail, key=lambda k: (start(k), -prio[k]))
            t = start(i)
        avail.remove(i)
        out.append(seg[i])
        if seg[i].kind == "mfma":
            mfma_free = t + seg[i].passes * 4
        for j, l in succs[i]:
            ready_at[j] = max(ready_at[j], t + l)
            left[j] -= 1
            if left[j] == 0:
                avail.append(j)
        t += seg[i].cost
    assert len(out) == n
    res = []
    for it in out:
        if it.kind == "bundle":
            res.extend(it.items)
        else:
            res.append(it)
    _list_schedule_segment.last_estimate = t
    return res
```

```python
from asmb import Prog, L, Ins, Need, Gap, Mark, Bundle, Sched, list_schedule
from layout import *
from k2gen import srd, OOB, Stamps, softmax_phi

N_FFN = 144
NPG_ATT = 14

sX, sW, sST, sCSP, sO1, sDBG, sPK, sW2, sPHI, sKV = 24, 28, 32, 36, 40, 44, 48, 52, 56, 60
s_w, s_cb, s_pg, s_b0, s_j0 = 64, 65, 66, 67, 68
s_jw, s_wlim, s_jx, s_xlim = 69, 70, 71, 72
s_mw, s_mx = 73, 74
s_so, s_t0, s_t1, s_t2, s_t3 = 75, 76, 77, 78, 79
s_st, s_out, s_pst, s_pcol = 80, 81, 82, 83
s_e = 3
s_slot = 3
sLO = 18
PROF_FIRST = 84
TOUCH = False
WMOD = ' nt'
XMOD = ''
PMOD = ' nt'
ROT = 10
STAMPSET = {'k', 'first', 'pro', 's7', 's15', 's23', 's31', 's39', 'corr', 'e0', 'end'}


def stamp(st_, tag):
    if tag in STAMPSET:
        st_.stamp()


def rng(c, b, n):
    return f"{c}[{b}:{b+n-1}]"


def flat(units):
    return [it for u in units for it in u]


class Var:
    def __init__(self, kind):
        self.kind = kind
        ffn = kind == "ffn"
        self.NT, self.NB = (3, 4) if ffn else (2, 5)
        self.NWD = 3 if ffn else 2
        self.stride = 3456 if ffn else 3840
        self.WREG = 12288 if ffn else 8192
        self.XST = self.NB * 4096
        self.WR0 = 3 * self.XST
        self.STG = self.WR0 + 8 * self.WREG
        assert self.STG + 16384 <= 163840
        self.ACC = 256 - 16 * self.NT * self.NB
        v = 2
        def alloc(n, align=1):
            nonlocal v
            v = (v + align - 1) // align * align
            b = v
            v += n
            return b
        self.vXD = alloc(1)
        self.vWD = alloc(self.NWD)
        self.vXA = alloc(4)
        self.nWT = 2 if ffn else 1
        self.vWT = alloc(self.NT * self.nWT)
        self.vOut = alloc(2)
        self.vSTo = alloc(1)
        self.vPK = alloc(2)
        if not ffn:
            self.vPW, self.vVW, self.vVW2, self.vPA, self.vVA = [alloc(1) for _ in range(5)]
            self.APH = alloc(8, 4)
        self.T = alloc(0, 4)
        self.nT = self.ACC - self.T
        self.STC, self.ST = ("v", self.T + 24) if ffn else ("a", 148)
        self.WF, self.XF = 0, 24
        self.ONES, self.CSA = 64, 68
        self.KV, self.BX = 80, 104

    def acc(self, b, tau):
        return self.ACC + 16 * (self.NT * b + tau)

    def wf(self, s, tau):
        return self.WF + 4 * (self.NT * (s & 1) + tau)

    def xf(self, s, b):
        return self.XF + 4 * (self.NB * (s & 1) + b)


def advance(reg, step, lim, wrap):
    return [Bundle(L(f"s_add_u32 s{reg}, s{reg}, {step}\ns_cmp_ge_u32 s{reg}, s{lim}\n"
                     f"s_cselect_b32 s{s_t3}, {wrap}, 0\ns_sub_u32 s{reg}, s{reg}, s{s_t3}"))]


def dma_w(V, s):
    u0 = []
    if s and (s & 3) == 0:
        u0 += advance(s_jw, 64 * V.stride, s_wlim, 640 * V.stride)[0].items
    u0 += L(f"s_add_u32 m0, s{s_mw}, {V.WR0 + (s & 7) * V.WREG}\ns_add_u32 s{s_so}, s{s_jw}, {(s & 3) * 16 * V.stride}")
    units = []
    for n in range(V.NWD):
        ins = Ins(f"buffer_load_dwordx4 v{V.vWD+n}, s[{sW}:{sW+3}], s{s_so} offen offset:{1024*n}{WMOD} lds", tok=f"w{s}")
        units.append((u0 if n == 0 else []) + [ins])
    return units


def dma_x(V, t, b):
    u = []
    if t and b == 0:
        u += advance(s_jx, 128, s_xlim, 1280)[0].items
    u += L(f"s_add_u32 m0, s{s_mx}, {(t % 3) * V.XST + b * 4096}\ns_add_u32 s{s_so}, s{s_jx}, {b * 40960}")
    u += [Ins(f"buffer_load_dwordx4 v{V.vXD}, s[{sX}:{sX+3}], s{s_so} offen{XMOD} lds", tok=f"x{t}")]
    return [u]


def w_reads(V, s):
    o = []
    reg = s & 7
    rowstep = 1536 if V.kind == "ffn" else 2048
    for tau in range(V.NT):
        b = V.wf(s, tau)
        if V.kind == "ffn":
            a, off = V.vWT + 2 * tau + (1 if reg >= 5 else 0), (reg - 5 if reg >= 5 else reg) * V.WREG
        else:
            a, off = V.vWT + tau, reg * V.WREG
        o.append([Ins(f"ds_read_b64_tr_b16 a[{b+2*x}:{b+2*x+1}], v{a} offset:{off + x*rowstep}") for x in range(2)])
    return o


def x_reads(V, s):
    t, u = s >> 2, s & 3
    return [Ins(f"ds_read_b128 {rng('a', V.xf(s, b), 4)}, v{V.vXA+u} offset:{(t % 3) * V.XST + b * 4096}") for b in range(V.NB)]


def reads(V, s):
    x, w = x_reads(V, s), w_reads(V, s)
    return [x[0]] + w[0] + x[1:] + flat(w[1:])


def allreduce16(v):
    return flat([L(f"v_add_f32_dpp v{v}, v{v}, v{v} row_ror:{sh} row_mask:0xf bank_mask:0xf") for sh in (8, 4, 2, 1)])


def swap_add(v, t, kind):
    return L(f"v_mov_b32 v{t}, v{v}\nv_permlane{kind}_swap_b32 v{v}, v{t}\nv_add_f32 v{v}, v{v}, v{t}")


def stats_addr(p, V):
    T = V.T
    p(f"s_lshl_b32 s{s_t0}, s2, 3\ns_lshl_b32 s{s_t1}, s{s_w}, 1\ns_add_u32 s{s_t0}, s{s_t0}, s{s_t1}")
    p(f"v_lshrrev_b32 v{T+36}, 5, v1\nv_add_u32 v{T+36}, s{s_t0}, v{T+36}\nv_and_b32 v{T+12}, 31, v1")
    p(f"v_mul_u32_u24 v{T+13}, 1280, v{T+36}\nv_lshl_add_u32 v{T+13}, v{T+12}, 4, v{T+13}")
    p(f"v_add_u32 v{T+14}, 1024, v{T+13}\nv_cmp_gt_u32 vcc, 16, v{T+12}\nv_mov_b32 v{T+15}, {OOB}")
    p(f"v_cndmask_b32 v{T+14}, v{T+15}, v{T+14}, vcc\nv_cndmask_b32 v{T+37}, 0, 1.0, vcc")


def stats_loads(V):
    T = V.T
    return [L(f"buffer_load_dwordx4 v[{T}:{T+3}], v{T+13}, s[{sX}:{sX+3}], 0 offen"),
            L(f"buffer_load_dwordx4 v[{T+4}:{T+7}], v{T+13}, s[{sX}:{sX+3}], 0 offen offset:512"),
            L(f"buffer_load_dwordx4 v[{T+8}:{T+11}], v{T+14}, s[{sX}:{sX+3}], 0 offen")]


def stats_finish(V):
    T = V.T
    E, a, b = T + 12, T + 38, T + 39
    tokv, mask = T + 36, T + 37
    o = []
    for d in range(12):
        o += L(f"v_lshlrev_b32 v{E+2*d}, 16, v{T+d}\nv_and_b32 v{E+2*d+1}, 0xffff0000, v{T+d}")
    o += L(f"v_add_f32 v{a}, v{E}, v{E+1}\nv_add_f32 v{b}, v{E+2}, v{E+3}")
    for i in range(4, 24, 2):
        o += L(f"v_add_f32 v{a}, v{a}, v{E+i}\nv_add_f32 v{b}, v{b}, v{E+i+1}")
    o += L(f"v_add_f32 v{a}, v{a}, v{b}")
    o += allreduce16(a) + swap_add(a, b, 16)
    o += L(f"v_mul_f32 v{a}, 0x3acccccd, v{a}")
    for i in range(24):
        o += L(f"v_sub_f32 v{E+i}, v{E+i}, v{a}")
    o += L(f"v_mul_f32 v{b}, v{E}, v{E}\nv_mul_f32 v{T}, v{E+16}, v{E+16}\nv_mul_f32 v{T+1}, v{E+1}, v{E+1}")
    for i in range(2, 16):
        r = b if i % 2 == 0 else T + 1
        o += L(f"v_fmac_f32 v{r}, v{E+i}, v{E+i}")
        if i < 9:
            o += L(f"v_fmac_f32 v{T}, v{E+15+i}, v{E+15+i}")
    o += L(f"v_add_f32 v{b}, v{b}, v{T+1}\nv_fmac_f32 v{b}, v{T}, v{mask}")
    o += allreduce16(b) + swap_add(b, T, 16)
    o += L(f"v_mov_b32 v{T}, 0x3727c5ac\nv_fmac_f32 v{T}, 0x3acccccd, v{b}\nv_rsq_f32 v{b}, v{T}")
    o += L(f"v_lshlrev_b32 v{T}, 3, v{tokv}\nv_and_b32 v{T+1}, 31, v1\nv_cmp_eq_u32 vcc, 0, v{T+1}\nv_mov_b32 v{T+1}, {OOB}\nv_cndmask_b32 v{T}, v{T+1}, v{T}, vcc")
    o += [Ins(f"buffer_store_dwordx2 v[{a}:{b}], v{T}, s[{sST}:{sST+3}], 0 offen sc1", tok="p0")]
    return o


PKA = 128
PKF = 132


def pack_addr(p, V):
    t = V.ACC + 32
    st, col = s_pst, s_pcol
    p(f"s_lshl_b32 s{s_t0}, s{s_w}, 8\ns_add_u32 s{s_t0}, s{s_t0}, s2")
    p(f"s_mul_hi_u32 s{st}, s{s_t0}, 0x1999999a\ns_mul_i32 s{col}, s{st}, 10\ns_sub_u32 s{col}, s{s_t0}, s{col}")
    p(f"s_cmp_ge_u32 s{st}, {NS_F}\ns_cselect_b32 s{sPK}, s10, s16\ns_cselect_b32 s{sPK+1}, s11, s17\ns_mov_b32 s{sPK+2}, {F*D*2}\ns_cselect_b32 s{sPK+2}, {D*D*2}, s{sPK+2}\ns_mov_b32 s{sPK+3}, 0x20000")
    p(f"s_cmp_ge_u32 s{s_t0}, 740\ns_cselect_b32 s{sPK+2}, 0, s{sPK+2}")
    p(f"v_lshrrev_b32 v{t}, 3, v1\nv_and_b32 v{t+1}, 7, v1\nv_lshlrev_b32 v{t+1}, 4, v{t+1}\ns_lshl_b32 s{s_t1}, s{col}, 7\nv_add_u32 v{t+1}, s{s_t1}, v{t+1}")
    p(f"v_lshrrev_b32 v{t+2}, 2, v{t}\nv_mul_u32_u24 v{t+2}, 20, v{t+2}\nv_bfe_u32 v{t+3}, v{t}, 1, 1\nv_mul_u32_u24 v{t+3}, 10, v{t+3}\nv_add_u32 v{t+2}, v{t+2}, v{t+3}\nv_and_b32 v{t+3}, 1, v{t}\nv_add3_u32 v{t+2}, v{t+2}, v{t+3}, 8")
    for i in range(4):
        p(f"s_sub_u32 s{s_t0}, s{st}, {NS_F}\ns_lshl_b32 s{s_t0}, s{s_t0}, 2\ns_add_u32 s{s_t0}, s{s_t0}, {i}")
        p(f"s_mul_hi_u32 s{s_t1}, s{s_t0}, 0x33333334\ns_mul_i32 s{s_t2}, s{s_t1}, 5\ns_sub_u32 s{s_t2}, s{s_t0}, s{s_t2}")
        p(f"s_mul_i32 s{s_t1}, s{s_t1}, 40\ns_lshr_b32 s{s_t0}, s{s_t2}, 1\ns_mul_i32 s{s_t0}, s{s_t0}, 20\ns_add_u32 s{s_t0}, s{s_t0}, s{s_t1}")
        p(f"s_and_b32 s{s_t3}, s{s_t2}, 1\ns_mul_i32 s{s_t3}, s{s_t3}, 10\ns_add_u32 s{s_t0}, s{s_t0}, s{s_t3}")
        p(f"s_cmp_eq_u32 s{s_t2}, 4\ns_cselect_b32 s{s_t0}, s{s_t1}, s{s_t0}\ns_cselect_b64 vcc, -1, 0")
        p(f"v_cndmask_b32 v{t+4}, v{t}, v{t+2}, vcc")
        p(f"s_lshl_b32 s{s_t1}, s{st}, 5\ns_add_u32 s{s_t1}, s{s_t1}, {8*i}")
        p(f"s_cmp_ge_u32 s{st}, {NS_F}\ns_cselect_b32 s{s_t0}, s{s_t0}, s{s_t1}\ns_cselect_b64 vcc, -1, 0")
        p(f"v_cndmask_b32 v{t+4}, v{t}, v{t+4}, vcc\nv_add_u32 v{t+4}, s{s_t0}, v{t+4}")
        p(f"v_mul_u32_u24 v{t+4}, 1280, v{t+4}\nv_add_u32 v{t+4}, v{t+4}, v{t+1}")
        p(f"v_accvgpr_write_b32 a{PKA+i}, v{t+4}")
    a = V.vPK
    p(f"v_lshrrev_b32 v{a}, 4, v1\nv_lshlrev_b32 v{a}, 3, v{a}\nv_bfe_u32 v{t}, v1, 2, 2\nv_add_u32 v{a}, v{a}, v{t}\nv_lshlrev_b32 v{a}, 7, v{a}")
    p(f"v_and_b32 v{t}, 3, v1\nv_lshl_add_u32 v{a}, v{t}, 3, v{a}\ns_lshl_b32 s{s_t0}, s{s_w}, 12\ns_add_u32 s{s_t0}, s{s_t0}, {V.STG}\nv_add_u32 v{a}, s{s_t0}, v{a}")
    p(f"v_lshlrev_b32 v{a+1}, 4, v1")


def pack_dma(V):
    t = V.T + 22
    units = []
    for i in range(4):
        u = L(f"v_accvgpr_read_b32 v{t + (i & 1)}, a{PKA+i}\ns_lshl_b32 s{s_so}, s{s_w}, 12\ns_add_u32 m0, s{s_so}, {V.STG + 1024*i}")
        u += [Ins(f"buffer_load_dwordx4 v{t + (i & 1)}, s[{sPK}:{sPK+3}], 0 offen{PMOD} lds", tok="pk")]
        units.append(u)
    return units


def pack_finish(V):
    st, col = s_pst, s_pcol
    o = [Need("pk")]
    for ft in range(4):
        o += L(f"ds_read_b64_tr_b16 a[{PKF+4*ft}:{PKF+4*ft+1}], v{V.vPK} offset:{32*ft}\nds_read_b64_tr_b16 a[{PKF+4*ft+2}:{PKF+4*ft+3}], v{V.vPK} offset:{32*ft+512}")
    o += [Gap(3)]
    for ft in range(4):
        a, b = s_t0, s_t1
        o += L(f"s_lshl_b32 s{a}, s{col}, 2\ns_add_u32 s{a}, s{a}, {ft}\ns_mul_hi_u32 s{b}, s{a}, 0x33333334\ns_mul_i32 s{s_t2}, s{b}, 5\ns_sub_u32 s{a}, s{a}, s{s_t2}")
        o += L(f"s_mul_i32 s{b}, s{b}, {NS_ALL}\ns_add_u32 s{b}, s{b}, s{st}\ns_mul_i32 s{b}, s{b}, 5120\ns_lshl_b32 s{a}, s{a}, 10\ns_add_u32 s{s_st}, s{b}, s{a}")
        o += [Bundle(L(f"s_cmp_ge_u32 s{st}, {NS_ALL}\ns_cselect_b32 s{s_st}, {OOB}, s{s_st}"))]
        o += [Ins(f"buffer_store_dwordx4 a[{PKF+4*ft}:{PKF+4*ft+3}], v{V.vPK+1}, s[{sW2}:{sW2+3}], s{s_st} offen sc1", tok="p0")]
    return o


def touches(p, V):
    t = V.ACC + 32
    d = V.ACC + 48
    ffn = V.kind == "ffn"
    n = 0
    for k in range(2):
        p(f"v_add_u32 v{t}, {64*k}, v1")
        if ffn:
            p(f"v_mul_u32_u24 v{t+1}, 21846, v{t}\nv_lshrrev_b32 v{t+1}, 16, v{t+1}\nv_mul_u32_u24 v{t+2}, 3, v{t+1}\nv_sub_u32 v{t+2}, v{t}, v{t+2}")
            p(f"s_and_b32 s{s_t0}, s{s_w}, 1\ns_lshl_b32 s{s_t0}, s{s_t0}, 5\nv_add_u32 v{t+1}, s{s_t0}, v{t+1}\nv_mul_u32_u24 v{t+1}, 3456, v{t+1}\nv_lshl_add_u32 v{t+1}, v{t+2}, 7, v{t+1}")
        else:
            p(f"v_mul_u32_u24 v{t+1}, 10923, v{t}\nv_lshrrev_b32 v{t+1}, 16, v{t+1}\nv_mul_u32_u24 v{t+2}, 6, v{t+1}\nv_sub_u32 v{t+2}, v{t}, v{t+2}")
            p(f"s_lshl_b32 s{s_t0}, s{s_w}, 4\nv_add_u32 v{t+1}, s{s_t0}, v{t+1}\nv_mul_u32_u24 v{t+1}, 3840, v{t+1}")
            p(f"v_lshrrev_b32 v{t+3}, 1, v{t+2}\nv_mul_u32_u24 v{t+3}, 1280, v{t+3}\nv_and_b32 v{t+2}, 1, v{t+2}\nv_mul_u32_u24 v{t+2}, 156, v{t+2}\nv_add3_u32 v{t+1}, v{t+1}, v{t+2}, v{t+3}")
        if k:
            p(f"v_cmp_gt_u32 vcc, 32, v1\nv_mov_b32 v{t+2}, {OOB}\nv_cndmask_b32 v{t+1}, v{t+2}, v{t+1}, vcc")
        p(f"buffer_load_dword v{d+n}, v{t+1}, s[{sW}:{sW+3}], s{s_jw} offen"); n += 1
    p(f"s_mul_i32 s{s_t1}, s{s_b0}, 40960")
    if ffn:
        p(f"v_and_b32 v{t}, 31, v1\ns_lshl_b32 s{s_t0}, s{s_w}, 5\nv_add_u32 v{t}, s{s_t0}, v{t}\nv_mul_u32_u24 v{t}, 1280, v{t}\nv_lshrrev_b32 v{t+1}, 5, v1\nv_add_u32 v{t+1}, s{s_j0}, v{t+1}")
        for k in range(3):
            p(f"v_add_u32 v{t+2}, {2*k}, v{t+1}\nv_subrev_u32 v{t+3}, 10, v{t+2}\nv_min_u32 v{t+2}, v{t+2}, v{t+3}\nv_lshl_add_u32 v{t+2}, v{t+2}, 7, v{t}")
            if k == 2:
                p(f"v_cmp_gt_u32 vcc, 32, v1\nv_mov_b32 v{t+3}, {OOB}\nv_cndmask_b32 v{t+2}, v{t+3}, v{t+2}, vcc")
            p(f"buffer_load_dword v{d+n}, v{t+2}, s[{sX}:{sX+3}], s{s_t1} offen"); n += 1
    else:
        for k in range(4):
            p(f"v_add_u32 v{t}, {256*k}, v0\nv_mul_u32_u24 v{t+1}, 52429, v{t}\nv_lshrrev_b32 v{t+1}, 23, v{t+1}\nv_mul_u32_u24 v{t+2}, 160, v{t+1}\nv_sub_u32 v{t+2}, v{t}, v{t+2}")
            p(f"v_mul_u32_u24 v{t+2}, 1280, v{t+2}\nv_add_u32 v{t+1}, s{s_j0}, v{t+1}\nv_subrev_u32 v{t+3}, 10, v{t+1}\nv_min_u32 v{t+1}, v{t+1}, v{t+3}\nv_lshl_add_u32 v{t+2}, v{t+1}, 7, v{t+2}")
            if k == 3:
                p(f"v_cmp_gt_u32 vcc, 32, v0\nv_mov_b32 v{t+3}, {OOB}\nv_cndmask_b32 v{t+2}, v{t+3}, v{t+2}, vcc")
            p(f"buffer_load_dword v{d+n}, v{t+2}, s[{sX}:{sX+3}], s{s_t1} offen"); n += 1


def cs_store(V):
    t = V.T + 38
    o = L(f"v_lshlrev_b32 v{t}, 2, v1\nv_cmp_gt_u32 vcc, 32, v1\nv_mov_b32 v{t+1}, {OOB}\nv_cndmask_b32 v{t}, v{t+1}, v{t}, vcc")
    o += L(f"s_lshl_b32 s{s_st}, s{s_j0}, 7")
    for tau in range(V.NT):
        o += [Ins(f"buffer_store_dword a{V.CSA+4*tau}, v{t}, s[{sCSP}:{sCSP+3}], s{s_st} offen offset:{1280*tau} sc1", tok="p0")]
    return o


def flag_prep(V):
    t = V.T + 38
    return L(f"v_cmp_eq_u32 vcc, 0, v1\nv_mov_b32 v{t}, {OOB}\nv_mov_b32 v{t+1}, s2\nv_cndmask_b32 v{t}, v{t}, v{t+1}, vcc\nv_mov_b32 v{t+1}, 1")


def flag_store(V, k):
    t = V.T + 38
    return L(f"s_cmp_eq_u32 s{s_slot}, {k}\ns_cselect_b32 s{s_t3}, 0, {OOB}") + \
        [Ins(f"buffer_store_byte v{t+1}, v{t}, s[{sDBG}:{sDBG+3}], s{s_t3} offen sc1")]


def zero_oflags(V):
    t = V.T
    o = L(f"v_mov_b32 v{t}, 0\nv_mov_b32 v{t+1}, 0\nv_mov_b32 v{t+2}, 0\nv_mov_b32 v{t+3}, 0\nv_lshlrev_b32 v{t+4}, 4, v0")
    o += [Bundle(L(f"s_cmp_eq_u32 s2, 255\ns_cselect_b32 s{s_st}, {FLAG_OFF - STATS_OFF}, {OOB}"))]
    o += [Ins(f"buffer_store_dwordx4 v[{t}:{t+3}], v{t+4}, s[{sKV}:{sKV+3}], s{s_st} offen sc1", tok="p0")]
    return o


PHI_LDS = 143360


def phi_addr(p, V):
    t = V.ACC + 48
    p(f"v_and_b32 v{t}, 31, v1\nv_lshrrev_b32 v{t+1}, 3, v{t}\nv_lshlrev_b32 v{t+1}, 2, v{t+1}\nv_and_b32 v{t+2}, 3, v{t}\nv_add_u32 v{t+1}, v{t+1}, v{t+2}")
    p(f"v_bfe_u32 v{t+2}, v{t}, 2, 1\nv_mul_u32_u24 v{t+2}, 10, v{t+2}\nv_add_u32 v{t+2}, v{t+2}, v{t+1}\nv_lshlrev_b32 v{t+2}, 1, v{t+2}")
    p(f"v_cmp_gt_u32 vcc, 10, v{t+1}\nv_mov_b32 v{t+3}, 1024\nv_cndmask_b32 v{t+2}, v{t+3}, v{t+2}, vcc")
    p(f"v_lshrrev_b32 v{t}, 5, v1\nv_mul_u32_u24 v{t+1}, 160, v{t}\nv_add_u32 v{t+1}, v{t+1}, v{t+2}")
    p(f"v_cmp_eq_u32 vcc, 0, v{t}\nv_cndmask_b32 v{t+2}, v{t+3}, v{t+2}, vcc")
    p(f"s_lshl_b32 s{s_t0}, s{s_w}, 11\ns_add_u32 s{s_t0}, s{s_t0}, {PHI_LDS}")
    p(f"v_add_u32 v{V.T+52}, s{s_t0}, v{t+1}\nv_add_u32 v{V.T+53}, s{s_t0}, v{t+2}")
    p(f"v_lshl_add_u32 v{t}, v1, 4, s{s_t0}")
    for i in range(4):
        p(f"v_mov_b32 v{t+4+i}, 0")
    p(f"ds_write_b128 v{t}, v[{t+4}:{t+7}] offset:1024", tok="phz")


def phi_dma(V):
    return [L(f"s_lshl_b32 s{s_so}, s{s_w}, 11\ns_add_u32 m0, s{s_so}, {PHI_LDS}") +
            [Ins(f"buffer_load_dwordx4 v{V.vOut}, s[{sPHI}:{sPHI+3}], 0 offen lds", tok="phi")]]


def phi_finish(V):
    R = V.T + 40
    o = [Need("phi"), Need("phz")]
    for e in range(8):
        d = e if e < 4 else e + 4
        o += L(f"ds_read_u16 v{R+e}, v{V.T+52} offset:{d*40}")
    for e in range(4):
        o += L(f"ds_read_u16 v{R+8+e}, v{V.T+53} offset:{(16+e)*40}")
    o += [Gap(4)]
    for k in range(6):
        o += L(f"v_lshl_or_b32 v{V.APH+k}, v{R+2*k+1}, 16, v{R+2*k}")
    o += L(f"v_mov_b32 v{V.APH+6}, 0\nv_mov_b32 v{V.APH+7}, 0")
    return o


def late_loads(V, spin):
    t = V.T
    CS = t + 4
    pre = L(f"v_lshlrev_b32 v{t}, 2, v1")
    pre += [Bundle(L(f"s_cmp_eq_u32 s{s_w}, 0\ns_cselect_b32 s{s_st}, 0, {OOB}") +
                   [Ins(f"buffer_load_dword v{t+1}, v{t}, s[{sDBG}:{sDBG+3}], s{s_st} offen sc1")])]
    chk = L(f"s_cmp_eq_u32 s{s_w}, 0\ns_cselect_b64 s[{s_t0}:{s_t1}], -1, 0\nv_cmp_ne_u32 vcc, 0x01010101, v{t+1}\ns_and_b64 vcc, vcc, s[{s_t0}:{s_t1}]\ns_cbranch_vccnz {spin}\n{spin}_go:")
    o = []
    for b in range(V.NB):
        r = V.ST + 2 * b
        o += [Bundle(L(f"s_add_u32 s{s_st}, s{s_b0}, {b}\ns_lshl_b32 s{s_st}, s{s_st}, 8") +
                     [Ins(f"buffer_load_dwordx2 {V.STC}[{r}:{r+1}], v{V.vSTo}, s[{sST}:{sST+3}], s{s_st} offen sc1")])]
    for tau in range(V.NT):
        for i in range(5):
            o += [Ins(f"buffer_load_dword v{CS+6*tau+i}, v{t}, s[{sCSP}:{sCSP+3}], 0 offen offset:{1280*tau + 256*i} sc1")]
    for b in range(V.NB):
        o += L(f"v_accvgpr_write_b32 a{V.BX+4*b+2}, 0\nv_accvgpr_write_b32 a{V.BX+4*b+3}, 0")
    o += [Gap(2 * V.NT * V.NB)]
    for tau in range(V.NT):
        c = CS + 6 * tau
        z = c + 5
        o += L(f"v_add_f32 v{c}, v{c}, v{c+1}\nv_add_f32 v{c+2}, v{c+2}, v{c+3}\nv_add_f32 v{c}, v{c}, v{c+4}\nv_add_f32 v{z}, v{c}, v{c+2}")
        o += swap_add(z, c + 4, 32)
        o += L(f"v_cmp_gt_u32 vcc, 32, v1\nv_cndmask_b32 v{z}, 0, v{z}, vcc")
        o += L(f"v_cvt_pk_bf16_f32 v{c+1}, v{z}, 0\nv_lshlrev_b32 v{c}, 16, v{c+1}\nv_sub_f32 v{c}, v{z}, v{c}\nv_cvt_pk_bf16_f32 v{c}, v{z}, v{c}\nv_mov_b32 v{c+2}, 0\nv_mov_b32 v{c+3}, 0")
    B = t + 2
    for b in range(V.NB):
        m = V.ST + 2 * b
        if V.STC == "a":
            o += L(f"v_accvgpr_read_b32 v{CS+16}, a{m}")
            m = CS + 16
        o += L(f"v_cvt_pk_bf16_f32 v{B}, -v{m}, -v{m}\nv_lshlrev_b32 v{B+1}, 16, v{B}\nv_sub_f32_e64 v{B+1}, -v{m}, v{B+1}\nv_cvt_pk_bf16_f32 v{B+1}, v{B+1}, 0")
        o += L(f"v_accvgpr_write_b32 a{V.BX+4*b}, v{B}\nv_accvgpr_write_b32 a{V.BX+4*b+1}, v{B+1}")
    tail = L(f"{spin}:\ns_mov_b32 s{s_t3}, 0x40000\n{spin}_loop:\ns_sleep 2\nbuffer_load_dword v{t+1}, v{t}, s[{sDBG}:{sDBG+3}], 0 offen sc1\n"
             f"s_waitcnt vmcnt(0)\nv_cmp_ne_u32 vcc, 0x01010101, v{t+1}\ns_nop 3\ns_cbranch_vccz {spin}_go\n"
             f"s_sub_u32 s{s_t3}, s{s_t3}, 1\ns_cmp_lg_u32 s{s_t3}, 0\ns_cbranch_scc1 {spin}_loop\ns_branch {spin}_go")
    return pre, chk, o, tail, CS


def corr_mfma(V, AX, b):
    return [Ins(f"v_mfma_f32_32x32x16_bf16 {rng('v', V.acc(b,t), 16)}, {rng('v', AX+6*t, 4)}, {rng('a', V.BX+4*b, 4)}, {rng('v', V.acc(b,t), 16)}")
            for t in range(V.NT)]


def epi_ffn(V, b):
    r = V.ST + 2 * b + 1
    rr = V.T + 32 + 2 * b
    so = s_st if b & 1 else s_t0
    o = L(f"v_mul_f32 v{rr}, v{r}, v{r}")
    o += [Bundle(L(f"s_add_u32 s{so}, s{s_b0}, {b}\ns_mul_i32 s{so}, s{so}, {2*NS_F*1024}\ns_add_u32 s{so}, s{so}, s{s_out}"))]
    for tau in range(V.NT):
        a = V.acc(b, tau)
        for e in range(8):
            o += L(f"v_max_f32 v{a+e}, 0, v{a+e}")
        for e in range(0, 8, 2):
            o += L(f"v_pk_mul_f32 v[{a+8+e}:{a+9+e}], v[{a+8+e}:{a+9+e}], v[{rr}:{rr+1}] op_sel_hi:[1,0]")
        for e in range(0, 8, 2):
            o += L(f"v_pk_mul_f32 v[{a+e}:{a+e+1}], v[{a+e}:{a+e+1}], v[{a+8+e}:{a+9+e}]")
        for k in range(4):
            o += L(f"v_cvt_pk_bf16_f32 v{a+8+k}, v{a+2*k}, v{a+2*k+1}")
        o += [Ins(f"buffer_store_dwordx4 v[{a+8}:{a+11}], v{V.vOut}, s[{sO1}:{sO1+3}], s{so} offen offset:{512*tau} sc1")]
    return o


PVW = 6144


def pk(op, d, a, b, c=None, mods=""):
    ops = f"v[{d}:{d+1}], v[{a}:{a+1}], v[{b}:{b+1}]" + (f", v[{c}:{c+1}]" if c is not None else "")
    return L(f"v_pk_{op}_f32 {ops} {mods}".rstrip())


def tagged(ins, name, mode):
    ins.mem = (name, mode)
    return ins


def epi_att(V, b):
    u = b & 1
    U = V.T + 32 * u
    lo = u * PVW
    A, Bq = V.acc(b, 0), V.acc(b, 1)
    PB, PH = U, U + 8
    r, one, c, mx, t0 = U + 24, U + 25, U + 26, U + 28, U + 30
    k1 = V.vXD
    BC = "op_sel_hi:[1,0]"
    so = s_st if u else s_t0
    o = L(f"v_accvgpr_read_b32 v{r}, a{V.ST+2*b+1}")
    o += L(f"v_mul_f32 v{c}, 0x3fb8aa3b, v{r}")
    def phi(src, dst):
        q = []
        for k in range(6):
            q += L(f"v_cvt_pk_bf16_f32 v{PB+k}, v{src+2*k}, v{src+2*k+1}")
        q += [Ins(f"v_mfma_f32_32x32x16_bf16 {rng('v',dst,16)}, {rng('v',V.APH,4)}, {rng('v',PB,4)}, 0"),
              Ins(f"v_mfma_f32_32x32x16_bf16 {rng('v',dst,16)}, {rng('v',V.APH+4,4)}, {rng('v',PB+4,4)}, {rng('v',dst,16)}")]
        return q
    o += phi(A, PH)
    for k in range(0, 10, 2):
        o += pk("mul", PH + k, PH + k, c, mods=BC)
    o += [Bundle(L(f"s_add_u32 s{so}, s{s_b0}, {b}\ns_mul_i32 s{so}, s{so}, 2560"))]
    o += [Ins(f"buffer_store_dwordx4 v[{PH}:{PH+3}], v{V.vOut}, s[{sO1}:{sO1+3}], s{so} offen sc1"),
          Ins(f"buffer_store_dwordx4 v[{PH+4}:{PH+7}], v{V.vOut}, s[{sO1}:{sO1+3}], s{so} offen offset:1024 sc1"),
          Ins(f"buffer_store_dwordx2 v[{PH+8}:{PH+9}], v{V.vOut+1}, s[{sO1}:{sO1+3}], s{so} offen offset:2048 sc1")]
    for k in (8, 10, 12, 14):
        o += pk("mul", A + k, A + k, r, mods=BC)
    for k in (12, 14):
        o += pk("mul", Bq + k, Bq + k, r, mods=BC)
    for X in (A + 8, A + 12, Bq + 12):
        o += L(f"v_cvt_pk_bf16_f32 v{X}, v{X}, v{X+1}\nv_cvt_pk_bf16_f32 v{X+1}, v{X+2}, v{X+3}")
    o += [Bundle(L(f"v_cmp_lt_f32 vcc, 0, v{r}\nv_cndmask_b32 v{one}, 0, v{k1}, vcc"))]
    o += L(f"v_cndmask_b32 v{A+8}, v{A+8}, v{one}, s[{sLO}:{sLO+1}]\nv_cndmask_b32 v{A+9}, v{A+9}, 0, s[{sLO}:{sLO+1}]")
    o += [tagged(Ins(f"ds_write_b64 v{V.vVW}, v[{A+12}:{A+13}] offset:{lo}"), f"V{u}", "w"),
          tagged(Ins(f"ds_write_b64 v{V.vVW2}, v[{A+8}:{A+9}] offset:{lo}"), f"V{u}", "w"),
          tagged(Ins(f"ds_write_b64 v{V.vVW}, v[{Bq+12}:{Bq+13}] offset:{lo+24}"), f"V{u}", "w")]
    o += phi(Bq, A)
    mn = mx + 1
    o += L(f"v_max3_f32 v{mx}, v{A}, v{A+1}, v{A+2}\nv_min3_f32 v{mn}, v{A}, v{A+1}, v{A+2}")
    for k in (3, 5, 7):
        o += L(f"v_max3_f32 v{mx}, v{mx}, v{A+k}, v{A+k+1}\nv_min3_f32 v{mn}, v{mn}, v{A+k}, v{A+k+1}")
    o += L(f"v_max_f32 v{mx}, v{mx}, v{A+9}\nv_min_f32 v{mn}, v{mn}, v{A+9}")
    o += L(f"v_mov_b32 v{t0}, v{mx}\nv_mov_b32 v{t0+1}, v{mn}")
    o += L(f"v_permlane32_swap_b32 v{mx}, v{t0}\nv_permlane32_swap_b32 v{mn}, v{t0+1}")
    o += L(f"v_max_f32 v{mx}, v{mx}, v{t0}\nv_min_f32 v{mn}, v{mn}, v{t0+1}")
    o += pk("mul", t0, mx, c, mods=BC)
    EP, EM = A, Bq
    for k in range(0, 10, 2):
        o += pk("fma", EM + k, A + k, c, t0, mods="op_sel:[0,0,1] op_sel_hi:[1,0,1] neg_lo:[1,0,0] neg_hi:[1,0,0]")
        o += pk("fma", EP + k, A + k, c, t0, mods="op_sel_hi:[1,0,0] neg_lo:[0,0,1] neg_hi:[0,0,1]")
    for k in range(10):
        o += L(f"v_exp_f32 v{EP+k}, v{EP+k}\nv_exp_f32 v{EM+k}, v{EM+k}")
    sp, sm = mx, mn
    for E, tmp, dst in ((EP, A + 10, sp), (EM, Bq + 10, sm)):
        o += pk("add", tmp, E, E + 2) + pk("add", tmp + 2, E + 4, E + 6)
        o += pk("add", tmp, tmp, tmp + 2) + pk("add", tmp, tmp, E + 8)
        o += L(f"v_add_f32 v{dst}, v{tmp}, v{tmp+1}")
    o += L(f"v_mov_b32 v{t0}, v{sp}\nv_mov_b32 v{t0+1}, v{sm}")
    o += L(f"v_permlane32_swap_b32 v{sp}, v{t0}\nv_permlane32_swap_b32 v{sm}, v{t0+1}")
    o += pk("add", sp, sp, t0)
    o += L(f"v_rcp_f32 v{sp}, v{sp}\nv_rcp_f32 v{sm}, v{sm}")
    for k in range(0, 10, 2):
        o += pk("mul", EP + k, EP + k, sp, mods=BC)
        o += pk("mul", EM + k, EM + k, sp, mods="op_sel:[0,1] op_sel_hi:[1,1]")
    P = PH
    vals = [EP + k for k in range(10)] + [EM + k for k in range(10)]
    for k in range(10):
        o += L(f"v_cvt_pk_bf16_f32 v{P+k}, v{vals[2*k]}, v{vals[2*k+1]}")
    o += [tagged(Ins(f"ds_write_b128 v{V.vPW}, v[{P}:{P+3}] offset:{lo}"), f"P{u}", "w"),
          tagged(Ins(f"ds_write_b128 v{V.vPW}, v[{P+4}:{P+7}] offset:{lo+32}"), f"P{u}", "w"),
          tagged(Ins(f"ds_write_b64 v{V.vPW}, v[{P+8}:{P+9}] offset:{lo+64}"), f"P{u}", "w")]
    FA, FB = A, PB
    for bt in range(2):
        for x in range(2):
            o.append(tagged(Ins(f"ds_read_b64_tr_b16 v[{FB+4*bt+2*x}:{FB+4*bt+2*x+1}], v{V.vVA} offset:{lo + x*4*72 + 32*bt}"), f"V{u}", "r"))
    for aa in range(3):
        for x in range(2):
            o.append(tagged(Ins(f"ds_read_b64_tr_b16 v[{FA+4*aa+2*x}:{FA+4*aa+2*x+1}], v{V.vPA} offset:{lo + x*4*112 + 32*aa}"), f"P{u}", "r"))
    for aa in range(3):
        for bt in range(2):
            kv = V.KV + 4 * (2 * aa + bt)
            o.append(Ins(f"v_mfma_f32_16x16x32_bf16 a[{kv}:{kv+3}], v[{FA+4*aa}:{FA+4*aa+3}], v[{FB+4*bt}:{FB+4*bt+3}], a[{kv}:{kv+3}]"))
    return o


def gen_body(p, V, st_, tails):
    T, lane = V.T, 1
    ffn = V.kind == "ffn"
    tmp = V.ACC
    NT, NB = V.NT, V.NB
    p(f"s_mul_i32 s{s_t0}, s{s_cb}, {384 if ffn else 160}")
    p(f"s_mul_i32 s{s_jw}, s{s_j0}, {64*V.stride}\ns_add_u32 s{s_jw}, s{s_jw}, s{s_t0}\ns_add_u32 s{s_wlim}, s{s_t0}, {640*V.stride}")
    p(f"s_mul_i32 s{s_t0}, s{s_b0}, 40960\ns_lshl_b32 s{s_jx}, s{s_j0}, 7\ns_add_u32 s{s_jx}, s{s_jx}, s{s_t0}\ns_add_u32 s{s_xlim}, s{s_t0}, 1280")
    if TOUCH:
        touches(p, V)
    stamp(st_, 'touch')
    p(f"v_lshrrev_b32 v{tmp}, 3, v{lane}\ns_lshl_b32 s{s_t0}, s{s_w}, 3\nv_add_u32 v{tmp}, s{s_t0}, v{tmp}")
    p(f"v_lshrrev_b32 v{tmp+1}, 1, v{tmp}\nv_xor_b32 v{tmp+1}, v{tmp+1}, v{lane}\nv_and_b32 v{tmp+1}, 7, v{tmp+1}\nv_lshlrev_b32 v{tmp+1}, 4, v{tmp+1}")
    p(f"v_mul_u32_u24 v{tmp}, 1280, v{tmp}\nv_add_u32 v{V.vXD}, v{tmp}, v{tmp+1}")
    if ffn:
        p(f"s_and_b32 s{s_t0}, s{s_w}, 1\ns_lshl_b32 s{s_t0}, s{s_t0}, 3\ns_lshr_b32 s{s_t1}, s{s_w}, 1\ns_lshl_b32 s{s_t1}, s{s_t1}, 2")
        for n in range(3):
            p(f"v_add_u32 v{tmp}, {64*n}, v{lane}\nv_mul_u32_u24 v{tmp+1}, 2731, v{tmp}\nv_lshrrev_b32 v{tmp+1}, 16, v{tmp+1}")
            p(f"v_mul_u32_u24 v{tmp+2}, 24, v{tmp+1}\nv_sub_u32 v{tmp+2}, v{tmp}, v{tmp+2}")
            p(f"v_and_b32 v{tmp+3}, 2, v{tmp+1}\nv_or_b32 v{tmp+3}, s{s_t1}, v{tmp+3}\nv_xor_b32 v{tmp+2}, v{tmp+2}, v{tmp+3}")
            p(f"v_add_u32 v{tmp+1}, s{s_t0}, v{tmp+1}\nv_mul_u32_u24 v{tmp+1}, 3456, v{tmp+1}\nv_lshl_add_u32 v{tmp+1}, v{tmp+2}, 4, v{tmp+1}")
            p(f"v_subrev_u32 v{V.vWD+n}, {1024*n}, v{tmp+1}" if n else f"v_mov_b32 v{V.vWD}, v{tmp+1}")
        p(f"s_mul_i32 s{s_mw}, s{s_w}, 3072")
    else:
        for i in range(2):
            p(f"v_lshrrev_b32 v{tmp}, 5, v{lane}\nv_add_u32 v{tmp}, {2*i}, v{tmp}")
            p(f"v_lshlrev_b32 v{tmp+1}, 2, v{tmp}\nv_and_b32 v{tmp+2}, 31, v{lane}\nv_xor_b32 v{tmp+1}, v{tmp+1}, v{tmp+2}")
            p(f"v_mul_u32_u24 v{tmp+2}, 6554, v{tmp+1}\nv_lshrrev_b32 v{tmp+2}, 16, v{tmp+2}")
            p(f"v_mul_u32_u24 v{tmp+3}, 1120, v{tmp+2}\nv_lshl_add_u32 v{tmp+3}, v{tmp+1}, 4, v{tmp+3}")
            p(f"s_lshl_b32 s{s_t0}, s{s_w}, 2\nv_add_u32 v{tmp}, s{s_t0}, v{tmp}\nv_mul_u32_u24 v{tmp}, 3840, v{tmp}\nv_add_u32 v{tmp}, v{tmp}, v{tmp+3}")
            if i:
                p(f"v_subrev_u32 v{tmp}, 1024, v{tmp}")
            p(f"v_cmp_gt_u32 vcc, 30, v{tmp+1}\nv_mov_b32 v{tmp+2}, {OOB}\nv_cndmask_b32 v{V.vWD+i}, v{tmp+2}, v{tmp}, vcc")
        p(f"s_lshl_b32 s{s_mw}, s{s_w}, 11")
    p(f"s_lshl_b32 s{s_mx}, s{s_w}, 10")
    stamp(st_, 'addr')
    first = [dma_x(V, 0, b) for b in range(NB)] + [dma_w(V, 0), dma_w(V, 1)]
    for u in first:
        p.extend(flat(u))
    stamp(st_, 'first')
    srd(p, sST, 22, STATS_OFF, S * 8)
    srd(p, sKV, 22, STATS_OFF, FLAG_OFF - STATS_OFF + 4096)
    srd(p, sW2, 22, W2P_OFF, 8 * NS_ALL * 5120)
    p(f"s_mov_b32 s{sDBG}, s20\ns_mov_b32 s{sDBG+1}, s21\ns_mov_b32 s{sDBG+2}, 256\ns_mov_b32 s{sDBG+3}, 0x20000")
    p(f"s_lshl_b32 s{s_t0}, s{s_cb}, 2\ns_add_u32 s{s_t0}, s{s_t0}, s{s_w}")
    if not ffn:
        p(f"s_add_u32 s{s_t0}, s{s_t0}, 36")
    p(f"s_mul_i32 s{s_t0}, s{s_t0}, 3840\ns_add_u32 s{s_t0}, s{s_t0}, {CSP_OFF}")
    srd(p, sCSP, 22, f"s{s_t0}", 3840)
    stamp(st_, 'srd')
    x0 = tmp + 10
    p(f"v_and_b32 v{x0}, 31, v{lane}\nv_lshrrev_b32 v{x0+1}, 1, v{x0}\nv_lshrrev_b32 v{x0+2}, 5, v{lane}\nv_xor_b32 v{x0+1}, v{x0+1}, v{x0+2}")
    p(f"v_and_b32 v{x0+1}, 7, v{x0+1}\nv_lshlrev_b32 v{x0+1}, 4, v{x0+1}\nv_lshl_add_u32 v{x0+1}, v{x0}, 7, v{x0+1}")
    for u in range(4):
        p(f"v_xor_b32 v{V.vXA+u}, {32*u}, v{x0+1}")
    p(f"v_lshlrev_b32 v{V.vSTo}, 3, v{x0}")
    if ffn:
        p(f"v_bfe_u32 v{tmp}, v{lane}, 2, 2")
        p(f"v_lshrrev_b32 v{tmp+1}, 5, v{lane}\nv_lshl_add_u32 v{tmp+1}, v{tmp+1}, 3, v{tmp}")
        p(f"v_bfe_u32 v{tmp+2}, v{lane}, 4, 1")
        p(f"v_and_b32 v{tmp+3}, 1, v{lane}\nv_bfe_u32 v{tmp+4}, v{lane}, 1, 1")
        p(f"v_and_b32 v{tmp+5}, 2, v{tmp}\nv_lshl_or_b32 v{tmp+5}, v{tmp+2}, 2, v{tmp+5}")
        p(f"v_mul_u32_u24 v{tmp+6}, 6144, v{tmp+2}\nv_mul_u32_u24 v{tmp+7}, 384, v{tmp+1}\nv_add_u32 v{tmp+6}, v{tmp+6}, v{tmp+7}\nv_lshl_add_u32 v{tmp+6}, v{tmp+4}, 3, v{tmp+6}")
        p(f"v_add_u32 v{tmp+6}, {V.WR0}, v{tmp+6}")
        for tau in range(3):
            p(f"s_mul_i32 s{s_t0}, s{s_w}, 6\ns_add_u32 s{s_t0}, s{s_t0}, {2*tau}\nv_add_u32 v{tmp+7}, s{s_t0}, v{tmp+3}")
            p(f"v_xor_b32 v{tmp+7}, v{tmp+7}, v{tmp+5}\nv_lshl_add_u32 v{V.vWT+2*tau}, v{tmp+7}, 4, v{tmp+6}")
            p(f"v_add_u32 v{V.vWT+2*tau+1}, {5*V.WREG}, v{V.vWT+2*tau}")
        p(f"v_bfe_u32 v{tmp+1}, v{lane}, 4, 1\nv_mul_u32_u24 v{tmp+1}, {NS_F*1024}, v{tmp+1}\nv_lshrrev_b32 v{tmp+2}, 5, v{lane}\nv_lshl_add_u32 v{tmp+1}, v{tmp+2}, 8, v{tmp+1}")
        p(f"v_and_b32 v{tmp+2}, 15, v{lane}\nv_lshl_add_u32 v{V.vOut}, v{tmp+2}, 4, v{tmp+1}")
        p(f"s_mul_i32 s{s_out}, s{s_cb}, 6144\ns_mul_i32 s{s_t0}, s{s_w}, 1536\ns_add_u32 s{s_out}, s{s_out}, s{s_t0}")
        srd(p, sO1, 22, H_OFF, NTB16 * NS_F * 1024)
    else:
        def beta(dst, slot, tau, t):
            p(f"v_lshrrev_b32 v{t}, 1, v{slot}\nv_and_b32 v{t+1}, 1, v{slot}")
            p(f"v_lshl_add_u32 v{t+2}, v{t}, 1, v{t+1}\nv_lshlrev_b32 v{t+2}, 3, v{t+2}\nv_add_u32 v{t+2}, {160*tau}, v{t+2}")
            if tau == 0:
                p(f"v_lshlrev_b32 v{t+3}, 3, v{t+1}\nv_add_u32 v{t+3}, 320, v{t+3}\nv_mov_b32 v{dst}, {320+16}")
            else:
                p(f"v_lshlrev_b32 v{t+3}, 3, v{t+1}\nv_add_u32 v{t+3}, {320+24}, v{t+3}\nv_mov_b32 v{dst}, {320+32}")
            p(f"v_cmp_gt_u32 vcc, 5, v{slot}\nv_cndmask_b32 v{dst}, v{dst}, v{t+2}, vcc")
            p(f"v_cmp_lt_u32 vcc, 5, v{slot}\nv_cndmask_b32 v{dst}, v{dst}, v{t+3}, vcc")
            p(f"s_mul_i32 s{s_t0}, s{s_w}, 40\nv_add_u32 v{dst}, s{s_t0}, v{dst}")
        p(f"v_bfe_u32 v{tmp}, v{lane}, 4, 1\nv_and_b32 v{tmp+1}, 3, v{lane}\nv_lshl_add_u32 v{tmp}, v{tmp}, 2, v{tmp+1}")
        p(f"v_bfe_u32 v{tmp+1}, v{lane}, 2, 2")
        p(f"v_lshrrev_b32 v{tmp+2}, 5, v{lane}\nv_lshl_add_u32 v{tmp+2}, v{tmp+2}, 3, v{tmp+1}\nv_lshlrev_b32 v{tmp+2}, 9, v{tmp+2}\nv_add_u32 v{tmp+2}, {V.WR0}, v{tmp+2}")
        for tau in range(2):
            beta(tmp + 3, tmp, tau, tmp + 12)
            p(f"v_lshlrev_b32 v{tmp+4}, 6, v{tmp+1}\nv_xor_b32 v{tmp+4}, v{tmp+4}, v{tmp+3}\nv_add_u32 v{V.vWT+tau}, v{tmp+4}, v{tmp+2}")
        p(f"v_lshlrev_b32 v{V.vOut}, 4, v{lane}\nv_lshlrev_b32 v{V.vOut+1}, 3, v{lane}")
        p(f"s_mul_i32 s{s_t0}, s{s_w}, {2*PVW}")
        p(f"v_and_b32 v{tmp}, 31, v{lane}\nv_lshrrev_b32 v{tmp+1}, 5, v{lane}")
        p(f"v_mul_u32_u24 v{V.vPW}, 112, v{tmp}\nv_lshl_add_u32 v{V.vPW}, v{tmp+1}, 4, v{V.vPW}\nv_add_u32 v{V.vPW}, s{s_t0}, v{V.vPW}")
        p(f"s_add_u32 s{s_t1}, s{s_t0}, 3584")
        p(f"v_mul_u32_u24 v{tmp+2}, 72, v{tmp}\nv_add_u32 v{tmp+2}, s{s_t1}, v{tmp+2}\nv_lshl_add_u32 v{V.vVW}, v{tmp+1}, 3, v{tmp+2}")
        p(f"v_mul_i32_i24 v{tmp+3}, -24, v{tmp+1}\nv_add_u32 v{tmp+3}, 40, v{tmp+3}\nv_add_u32 v{V.vVW2}, v{tmp+2}, v{tmp+3}")
        p(f"v_lshrrev_b32 v{tmp}, 4, v{lane}\nv_lshlrev_b32 v{tmp}, 3, v{tmp}\nv_bfe_u32 v{tmp+1}, v{lane}, 2, 2\nv_add_u32 v{tmp}, v{tmp}, v{tmp+1}")
        p(f"v_and_b32 v{tmp+1}, 3, v{lane}\nv_lshlrev_b32 v{tmp+1}, 3, v{tmp+1}")
        p(f"v_mul_u32_u24 v{V.vPA}, 112, v{tmp}\nv_add3_u32 v{V.vPA}, v{V.vPA}, v{tmp+1}, s{s_t0}")
        p(f"v_mul_u32_u24 v{V.vVA}, 72, v{tmp}\nv_add3_u32 v{V.vVA}, v{V.vVA}, v{tmp+1}, s{s_t1}")
        p(f"s_lshl_b32 s{s_t0}, s{s_cb}, 2\ns_add_u32 s{s_t0}, s{s_t0}, s{s_w}")
        p(f"s_mul_i32 s{s_t1}, s{s_t0}, {NB32*2560}\ns_add_u32 s{s_t1}, s{s_t1}, {LOG_OFF}")
        srd(p, sO1, 22, f"s{s_t1}", NB32 * 2560)
        p(f"s_mul_i32 s{s_t1}, s{s_t0}, 800")
        srd(p, sPHI, 8, f"s{s_t1}", 800)
        for r in range(24):
            p(f"v_accvgpr_write_b32 a{V.KV+r}, 0")
    p(f"v_and_b32 v{tmp}, 31, v{lane}\nv_cmp_eq_u32 vcc, 0, v{lane}\nv_cmp_eq_u32 s[{s_t0}:{s_t1}], 32, v{lane}\ns_or_b64 vcc, vcc, s[{s_t0}:{s_t1}]")
    p(f"v_cmp_eq_u32 s[{s_t0}:{s_t1}], 20, v{tmp}\ns_or_b64 vcc, vcc, s[{s_t0}:{s_t1}]\nv_mov_b32 v{tmp}, 0x3f803f80\nv_cndmask_b32 v{tmp}, 0, v{tmp}, vcc")
    for i in range(4):
        p(f"v_accvgpr_write_b32 a{V.ONES+i}, v{tmp}")
    pack_addr(p, V)
    stats_addr(p, V)
    if not ffn:
        phi_addr(p, V)
    p(f"s_lshr_b32 s{s_t0}, s2, 3\ns_and_b32 s{s_t0}, s{s_t0}, 7\ns_cmp_eq_u32 s{s_w}, 0\ns_cselect_b32 s{s_slot}, s{s_t0}, 99")
    p(f"s_mov_b32 s{sLO}, -1\ns_mov_b32 s{sLO+1}, 0")
    stamp(st_, 'valu')
    p.extend(flat(dma_w(V, 2)))
    stamp(st_, 'pro')
    sc = Sched(p)
    G = NT * NB
    sc.at(dma_w(V, 3) + flat([dma_x(V, 1, b) for b in range(NB)]) + dma_w(V, 4), G + G // 2)
    sc.at(dma_w(V, 5) + dma_w(V, 6) + flat([dma_x(V, 2, b) for b in range(NB)]) + dma_w(V, 7), 2 * G, start=G + G // 2)
    pre, chk, late, tail, AX = late_loads(V, f"L_spin_{V.kind}")
    tails.append(tail)
    p.need("w0"); p.need("w1"); p.need("x0")
    p("s_barrier")
    stamp(st_, 'bar0')
    for it in reads(V, 0):
        p.add(it)
    P0_PH, FLAG_PH, POLL_PH, CHK_PH = 2, 8, 15, 16
    for s in range(40):
        ph = s >> 1
        if s == 1:
            p.need("w2")
            p("s_barrier")
        if (s & 1) == 0 and ph >= 1:
            for sw in (2 * ph + 1, 2 * ph + 2):
                if sw < 40:
                    p.need(f"w{sw}")
            if (s & 3) == 2 and (s + 2) // 4 < 10:
                p.need(f"x{(s + 2) // 4}")
            if ph == FLAG_PH:
                sc.flush("p0_done")
                p.need("p0")
            if ph == CHK_PH:
                sc.flush()
                p.extend(chk)
            p("s_barrier")
            if ph == POLL_PH:
                sc.push(pre)
            if ph == CHK_PH:
                sc.push(late)
            batch = []
            for sw in (2 * ph + 6, 2 * ph + 7):
                if 8 <= sw < 40:
                    batch += dma_w(V, sw)
            for sx in (s, s + 1):
                t, b = (sx + 8) >> 2, (sx + 8) & 3
                if 3 <= t < 10:
                    batch += dma_x(V, t, b)
                    if NB == 5 and b == 3:
                        batch += dma_x(V, t, 4)
            if ph == P0_PH:
                batch += stats_loads(V) + pack_dma(V) + ([] if ffn else phi_dma(V))
            if FLAG_PH <= ph < FLAG_PH + 4:
                k = 2 * (ph - FLAG_PH)
                h = len(batch) // 2
                batch = [flag_store(V, k)] + batch[:h] + [flag_store(V, k + 1)] + batch[h:]
            if batch:
                sc.at(batch, 2 * G)
        if s == 4:
            sc.push(cs_store(V))
        if s == 7:
            sc.push(stats_finish(V) + pack_finish(V) + zero_oflags(V) + ([] if ffn else phi_finish(V)) + flag_prep(V) + [Mark("p0_done")])
        rd = reads(V, s + 1) if s + 1 < 40 else []
        k = 0
        for tau in range(NT):
            for b in range(NB):
                a = V.acc(b, tau)
                c = "0" if s == 0 else f"v[{a}:{a+15}]"
                g = [Ins(f"v_mfma_f32_32x32x16_bf16 v[{a}:{a+15}], {rng('a', V.wf(s, tau), 4)}, {rng('a', V.xf(s, b), 4)}, {c}")]
                g += rd[k:k + 1]; k += 1
                sc.group(g)
            if s < 4:
                ca = rng('a', V.CSA + 4 * tau, 4)
                sc.group([Ins(f"v_mfma_f32_16x16x32_bf16 {ca}, {rng('a', V.ONES, 4)}, {rng('a', V.wf(s, tau), 4)}, {'0' if s == 0 else ca}")] + rd[k:k + 1])
                k += 1 if k < len(rd) else 0
        for it in rd[k:]:
            p.add(it)
        stamp(st_, f's{s}')
    sc.flush_forced()
    sc.flush()
    stamp(st_, 'corr')
    if not ffn:
        p("s_barrier")
        p(f"v_mov_b32 v{V.vXD}, 0x3f80")
        for u in range(2):
            p(f"v_mov_b32 v{V.T+32*u+6}, 0\nv_mov_b32 v{V.T+32*u+7}, 0")
    ep = []
    for b in range(NB):
        ep += corr_mfma(V, AX, b)
    for b in range(NB):
        ep += (epi_ffn if ffn else epi_att)(V, b)
    p.extend(list_schedule(ep))
    stamp(st_, 'epi')
    if not ffn:
        p(f"v_and_b32 v{T}, 15, v{lane}\nv_mul_u32_u24 v{T+1}, 192, v{T}\nv_lshrrev_b32 v{T+2}, 4, v{lane}\nv_lshl_add_u32 v{T+1}, v{T+2}, 4, v{T+1}")
        p(f"v_cmp_gt_u32 vcc, 5, v{T}\nv_mov_b32 v{T+2}, {OOB}\nv_cndmask_b32 v{T+2}, v{T+2}, v{T+1}, vcc")
        p(f"s_lshl_b32 s{s_t0}, s{s_cb}, 4\ns_add_u32 s{s_t0}, s{s_t0}, s{s_pg}\ns_lshl_b32 s{s_t0}, s{s_t0}, 2\ns_add_u32 s{s_t0}, s{s_t0}, s{s_w}\ns_lshl_b32 s{s_t0}, s{s_t0}, 12")
        p(f"s_add_u32 s{s_t0}, s{s_t0}, {KVP_OFF}")
        srd(p, sKV, 22, f"s{s_t0}", 4096)
        for a in range(3):
            for bt in range(2):
                kv = V.KV + 4 * (2 * a + bt)
                p(f"buffer_store_dwordx4 a[{kv}:{kv+3}], v{T+1+bt}, s[{sKV}:{sKV+3}], 0 offen offset:{64*a + 3072*bt} sc1")


def rotation(p):
    if ROT == 1:
        p(f"s_mov_b32 s{s_j0}, 0")
        return
    p(f"s_mul_i32 s{s_j0}, s{s_cb}, {max(ROT // 2, 1)}\ns_add_u32 s{s_j0}, s{s_j0}, s{s_pg}")
    p(f"s_mul_hi_u32 s{s_t0}, s{s_j0}, {(2**32 + ROT - 1) // ROT}\ns_mul_i32 s{s_t0}, s{s_t0}, {ROT}\ns_sub_u32 s{s_j0}, s{s_j0}, s{s_t0}")
    p(f"s_mul_i32 s{s_j0}, s{s_j0}, {10 // ROT}")


def gen_ka(name="ka_kernel", prof=False):
    p = Prog()
    st_ = Stamps(p, prof, first=PROF_FIRST)
    tails = []
    p(f"{name}:")
    p("s_cmp_ge_u32 s2, 256\ns_cbranch_scc1 L_ka_end")
    p("s_load_dwordx4 s[4:7], s[0:1], 0\ns_load_dwordx4 s[8:11], s[0:1], 16\ns_load_dwordx4 s[12:15], s[0:1], 40\n"
      "s_load_dwordx2 s[16:17], s[0:1], 56\ns_load_dwordx4 s[20:23], s[0:1], 72")
    p(f"s_and_b32 s{s_e}, s2, 7\ns_lshl_b32 s{s_e}, s{s_e}, 5\ns_lshr_b32 s{s_t0}, s2, 3\ns_add_u32 s{s_e}, s{s_e}, s{s_t0}")
    p(f"v_lshrrev_b32 v1, 6, v0\ns_nop 0\nv_readfirstlane_b32 s{s_w}, v1\nv_and_b32 v1, 63, v0")
    p(f"s_cmp_ge_u32 s{s_e}, {N_FFN}\ns_cbranch_scc1 L_ka_att")
    p(f"s_lshr_b32 s{s_cb}, s{s_e}, 4\ns_and_b32 s{s_pg}, s{s_e}, 15\ns_lshl_b32 s{s_b0}, s{s_pg}, 2")
    rotation(p)
    p("s_waitcnt lgkmcnt(0)")
    stamp(st_, 'k')
    srd(p, sX, 4, 0, S * D * 2)
    p(f"s_cmp_ge_u32 s{s_w}, 2\ns_cselect_b32 s{sW}, s14, s12\ns_cselect_b32 s{sW+1}, s15, s13\ns_mov_b32 s{sW+2}, {D*F*2}\ns_mov_b32 s{sW+3}, 0x20000")
    n0 = st_.n
    gen_body(p, Var("ffn"), st_, tails)
    if prof:
        p("s_waitcnt vmcnt(0)")
    stamp(st_, 'end')
    p("s_branch L_ka_fin")
    p.settle()
    p("L_ka_att:")
    p("s_waitcnt vmcnt(0) lgkmcnt(0)")
    st_.n = 0
    p(f"s_sub_u32 s{s_t0}, s{s_e}, {N_FFN}\ns_mul_hi_u32 s{s_cb}, s{s_t0}, {(2**32 + NPG_ATT - 1)//NPG_ATT}\ns_mul_i32 s{s_t1}, s{s_cb}, {NPG_ATT}\ns_sub_u32 s{s_pg}, s{s_t0}, s{s_t1}\ns_mul_i32 s{s_b0}, s{s_pg}, 5")
    rotation(p)
    stamp(st_, 'k')
    srd(p, sX, 4, 0, S * D * 2)
    srd(p, sW, 6, 0, D * 3 * D * 2)
    gen_body(p, Var("att"), st_, tails)
    if prof:
        p("s_waitcnt vmcnt(0)")
    stamp(st_, 'end')
    p("L_ka_fin:")
    st_.flush(22, 1, s_w)
    p("L_ka_end:\ns_endpgm")
    tp = Prog()
    for t in tails:
        tp.extend(t)
    body = p.finish() + "\n" + "\n".join(("" if i.kind == "label" else "  ") + i.text for i in tp.items)
    return body, dict(n=len(p.items), nops=p.nops_added, waits=p.waits_added, stamps=st_.n)


if __name__ == "__main__":
    import k2gen
    for k in ("ffn", "att"):
        V = Var(k); print(k, "temps start", V.T, "count", V.nT, "STG", V.STG)
    b, i = gen_ka(); print(i)
    open("ka.s", "w").write(k2gen.wrap([("ka_kernel", b, 256, 256, 163840, 512, 256)]))
```

```python
import kagen, k2gen, os
if os.environ.get('TOUCH'):
    kagen.TOUCH = True
for k in ('WMOD', 'XMOD', 'PMOD'):
    if k in os.environ:
        setattr(kagen, k, os.environ[k])
if os.environ.get('ROT'):
    kagen.ROT = int(os.environ['ROT'])
if os.environ.get('STAMPS'):
    kagen.STAMPSET = set(os.environ['STAMPS'].split(','))
def build_text(prof=False):
    b1, i1 = kagen.gen_ka(prof=prof)
    b2, i2 = k2gen.gen_k2(prof=prof)
    ks = [("ka_kernel", b1, 256, 256, 163840, 512, 256),
          ("k2_kernel", b2, 256, 256, 86016, 512, 256)]
    return k2gen.wrap(ks), ks, (i1, i2)
NSTAMPS = [(11, "ka", 1), (7, "k2", 2)]
def GROUPS(nm, e):
    import numpy as np
    if nm == "ka":
        return [("ka ffn", e < 144, 11), ("ka att", (e >= 144) & ((e - 144) % 14 < 13), 11)]
    return [(nm, np.ones(256, bool), 7)]
if __name__ == "__main__":
    import sys
    txt, ks, info = build_text(False)
    hdr = open("parallel_sum__linear_kernel_hedgehog__glu_gated_reglu__prompt.s.ref").read().split("\n")
    keep = [l for l in hdr if l.startswith(";") and "@launch" not in l and "Override launch" not in l and "grid=ceil" not in l]
    keep = keep[:12]
    out = "\n".join(keep) + "\n" + txt
    path = sys.argv[1] if len(sys.argv) > 1 else "parallel_sum__linear_kernel_hedgehog__glu_gated_reglu__prompt.s"
    open(path, "w").write(out)
    print(info, len(out))
```
